```python
import torch

def _softmax(x, axis=-1):
    return torch.softmax(x, dim=axis)

def _gelu(x):
    return torch.nn.functional.gelu(x, approximate='tanh')

def _silu(x):
    return torch.nn.functional.silu(x)

def _sigmoid(x):
    return torch.sigmoid(x)

def _layernorm(x, axis=-1, eps=1e-05):
    m = x.mean(dim=axis, keepdim=True)
    v = x.var(dim=axis, keepdim=True, unbiased=False)
    return (x - m) / torch.sqrt(v + eps)

def _scatter_add(tgt, idx, src, axis=0):
    return tgt.clone().index_add_(axis, idx, src)

def _segment_sum(src, seg, n):
    out = torch.zeros((n,) + src.shape[1:], dtype=src.dtype)
    return out.index_add_(0, seg, src)

def _pad(x, pw):
    flat = tuple((v for pair in reversed(pw) for v in pair))
    return torch.nn.functional.pad(x, flat)
kernel_name = 'adaLN_cond__ssm_conv_h3__dense_activation_silu__prompt'

def setup_inputs():

    _w = lambda a: (lambda t: t.to(torch.bfloat16) if t.is_floating_point() else t)(torch.as_tensor(a))

    def _A_setup():
        B, S, D = (1, 2048, 1024)
        ks = 4
        return {'q': _w((lambda *s: torch.randn(*s, dtype=torch.bfloat16) * 0.05)(B, S, D)), 'k': _w((lambda *s: torch.randn(*s, dtype=torch.bfloat16) * 0.8)(B, S, D)), 'v': _w((lambda *s: torch.randn(*s, dtype=torch.bfloat16) * 0.8)(B, S, D)), 'shift_k': _w((lambda *s: torch.randn(*s, dtype=torch.bfloat16) * 0.8)(D, ks) * 0.5), 'ssm_k': _w((lambda *s: torch.randn(*s, dtype=torch.bfloat16) * 0.8)(D, S) * (1.0 / S ** 0.5)), 'ssm_D': _w((lambda *s: torch.randn(*s, dtype=torch.bfloat16) * 0.8)(D))}
    _A_in = _A_setup()

    def _B_setup():
        B, S, D, F = (1, 2048, 1024, 3584)
        return {'x': _w((lambda *s: torch.randn(*s, dtype=torch.bfloat16) * 0.05)(B, S, D)), 'w1': _w((lambda *s: torch.randn(*s, dtype=torch.bfloat16) * 3.2)(D, F) * D ** (-0.5)), 'w2': _w((lambda *s: torch.randn(*s, dtype=torch.bfloat16) * 1.6)(F, D) * F ** (-0.5))}
    _B_in = _B_setup()
    return {'A_q': _A_in['q'], 'A_k': _A_in['k'], 'A_v': _A_in['v'], 'A_shift_k': _A_in['shift_k'], 'A_ssm_k': _A_in['ssm_k'], 'A_ssm_D': _A_in['ssm_D'], 'B_x': _B_in['x'], 'B_w1': _B_in['w1'], 'B_w2': _B_in['w2'], 'c': _w((lambda *s: torch.randn(*s, dtype=torch.bfloat16) * 0.1)(1, 1024) * 8.0), 'w_mod': _w((lambda *s: torch.randn(*s, dtype=torch.bfloat16) * 0.1)(1024, 6 * 1024) * 1024 ** (-0.5) * 8.0)}

def reference(A_q, A_k, A_v, A_shift_k, A_ssm_k, A_ssm_D, B_x, B_w1, B_w2, c, w_mod):

    def _A_ref(q, k, v, shift_k, ssm_k, ssm_D):
        B, S, D = q.shape
        ks = shift_k.shape[-1]
        k_pad = _pad(k, ((0, 0), (ks - 1, 0), (0, 0)))
        k_shift = torch.zeros_like(k)
        for t in range(ks):
            k_shift = k_shift + k_pad[:, t:t + S, :] * shift_k[:, ks - 1 - t][None, None, :]
        kv = k_shift * v
        L = 2 * S
        kv_pad = _pad(kv, ((0, 0), (0, S), (0, 0)))
        kf_pad = _pad(ssm_k, ((0, 0), (0, S)))
        kv_f = (lambda x, axes=(-2, -1): torch.fft.rfft2(x.float(), dim=axes))(kv_pad[:, None, :, :], axes=(1, 2))
        kf_f = (lambda x, axes=(-2, -1): torch.fft.rfft2(x.float(), dim=axes))(kf_pad[:, None, :], axes=(1, 2))
        kf_f = (lambda x, *d: x.permute(*d))(kf_f, 1, 2, 0)
        y_f = kv_f * kf_f[None, :, :, :]
        y = (lambda x, s, axes=(-2, -1): torch.fft.irfft2(x, s=s, dim=axes).to(torch.bfloat16))(y_f, (1, L), axes=(1, 2))[:, 0, :S, :]
        y = y + kv * ssm_D[None, None, :]
        return q * y

    def _B_ref(x, w1, w2):
        h = torch.einsum('bsd,df->bsf', x, w1)
        h = _silu(h)
        out = torch.einsum('bsf,fd->bsd', h, w2)
        return out
    x = A_q
    mod = (_silu(c) @ w_mod).reshape(c.shape[0], 6, 1, -1)
    sa, ca, ga, sb, cb, gb = (mod[:, 0].clone(), mod[:, 1].clone(), mod[:, 2].clone(), mod[:, 3].clone(), mod[:, 4].clone(), mod[:, 5].clone())
    h = _layernorm(x, axis=-1) * (1 + ca) + sa
    x = x + ga * _A_ref(h, A_k, A_v, A_shift_k, A_ssm_k, A_ssm_D)
    h = _layernorm(x, axis=-1) * (1 + cb) + sb
    x = x + gb * _B_ref(h, B_w1, B_w2)
    return x
```

```python
class Asm:
    def __init__(self):
        self.lines = []
    def __call__(self, s=""):
        for l in s.split("\n"):
            self.lines.append(l)
    def text(self):
        return "\n".join(self.lines) + "\n"

def kernel_head(name):
    return f""".text
.globl {name}
.p2align 8
.type {name},@function
{name}:"""

def kernel_desc(name, vgpr, sgpr, accum, kernarg=112, extra=""):
    return f""".section .rodata,"a"
.p2align 6
.amdhsa_kernel {name}
  .amdhsa_next_free_vgpr {vgpr}
  .amdhsa_next_free_sgpr {sgpr}
  .amdhsa_accum_offset {accum}
  .amdhsa_group_segment_fixed_size 0
  .amdhsa_kernarg_size {kernarg}
  .amdhsa_user_sgpr_count 2
  .amdhsa_user_sgpr_kernarg_segment_ptr 1
  .amdhsa_system_sgpr_workgroup_id_x 1
{extra}.end_amdhsa_kernel
"""

def srd(a, d, b, nbytes):
    a(f"s_mov_b32 s{d}, s{b}")
    a(f"s_and_b32 s{d+1}, s{b+1}, 0xffff")
    a(f"s_mov_b32 s{d+2}, {nbytes}")
    a(f"s_mov_b32 s{d+3}, 0x00020000")

def srd_off(a, d, b, off, nbytes):
    a(f"s_add_u32 s{d}, s{b}, {off}")
    a(f"s_addc_u32 s{d+1}, s{b+1}, 0")
    a(f"s_and_b32 s{d+1}, s{d+1}, 0xffff")
    a(f"s_mov_b32 s{d+2}, {nbytes}")
    a(f"s_mov_b32 s{d+3}, 0x00020000")


class Prog:
    def __init__(self):
        self.items = []
    def i(self, text):
        for l in text.split("\n"):
            l = l.strip()
            if l:
                self.items.append((l, None, None))
    def vm(self, text, tag=None):
        self.items.append((text, 'vm', tag))
    def lg(self, text, tag=None):
        self.items.append((text, 'lg', tag))
    def wvm(self, tag):
        self.items.append((None, 'wvm', tag))
    def wlg(self, tag):
        self.items.append((None, 'wlg', tag))
    def extend(self, items):
        self.items.extend(items)
    def emit(self, a):
        vm = []; lg = []
        vm_done = 0; lg_done = 0
        for text, kind, tag in self.items:
            if kind == 'vm':
                vm.append(tag); a(text)
            elif kind == 'lg':
                lg.append(tag); a(text)
            elif kind == 'wvm':
                if tag == 'ALL':
                    a("s_waitcnt vmcnt(0)"); vm_done = len(vm); continue
                idx = max((k for k, t in enumerate(vm) if t == tag), default=None)
                assert idx is not None, f"no vm op with tag {tag}"
                if idx < vm_done:
                    continue
                n = min(len(vm) - 1 - idx, 63)
                a(f"s_waitcnt vmcnt({n})")
                vm_done = len(vm) - n
            elif kind == 'wlg':
                if tag == 'ALL':
                    a("s_waitcnt lgkmcnt(0)"); lg_done = len(lg); continue
                idx = max((k for k, t in enumerate(lg) if t == tag), default=None)
                assert idx is not None, f"no lg op with tag {tag}"
                if idx < lg_done:
                    continue
                n = min(len(lg) - 1 - idx, 15)
                a(f"s_waitcnt lgkmcnt({n})")
                lg_done = len(lg) - n
            else:
                a(text)
                if text.startswith("s_waitcnt"):
                    raise RuntimeError("raw waitcnt inside Prog: " + text)

def I(text): return (text, None, None)
def VM(text, tag=None): return (text, 'vm', tag)
def LG(text, tag=None): return (text, 'lg', tag)
def WVM(tag): return (None, 'wvm', tag)
def WLG(tag): return (None, 'wlg', tag)

def vr(b, n=1):
    return f"v{b}" if n == 1 else f"v[{b}:{b+n-1}]"
def ar(b, n=1):
    return f"a{b}" if n == 1 else f"a[{b}:{b+n-1}]"
def sr(b, n=1):
    return f"s{b}" if n == 1 else f"s[{b}:{b+n-1}]"
```

```python
from asmlib import *

WS_MOD = 0
WS_MODP = 0x8000
WS_Y = 0x100000
WS_X1 = 0x500000
WS_H2 = 0x900000
WS_H = 0xD00000
BIG = 0x40000000

K1_GP = 0
K1_KC = 1024
K1_CP = 4160
K1_KCW = 4 * K1_CP
K1_UR = K1_KC + 4 * K1_KCW
K1_URW = 4608
K1_LDS = K1_UR + 4 * K1_URW

def gen_k1(a, name="conv_kernel", ldflag="nt", wflag="nt"):
    a(kernel_head(name))
    a("s_cmp_ge_u32 s2, 256")
    a(f"s_cbranch_scc1 {name}_end")
    a("s_load_dwordx8 s[4:11], s[0:1], 8")
    a("s_load_dwordx2 s[12:13], s[0:1], 40")
    a("s_load_dwordx4 s[16:19], s[0:1], 72")
    a("s_load_dwordx4 s[20:23], s[0:1], 96")
    a("v_lshrrev_b32 v9, 6, v0")
    a("v_and_b32 v1, 63, v0")
    a("v_readfirstlane_b32 s3, v9")
    a("s_and_b32 s88, s2, 7")
    a("s_lshr_b32 s89, s2, 3")
    a("s_lshl_b32 s90, s88, 7")
    a("s_lshl_b32 s93, s89, 2")
    a("s_add_u32 s90, s90, s93")
    a("s_lshl_b32 s87, s90, 1")
    a("s_mov_b32 s91, s89")
    a("s_mov_b32 s92, s88")
    a("s_waitcnt lgkmcnt(0)")
    a("s_lshl_b32 s93, s90, 3")
    a("s_add_u32 s8, s8, s93")
    a("s_addc_u32 s9, s9, 0")
    a("s_load_dwordx8 s[60:67], s[8:9], 0")
    a("s_add_u32 s12, s12, s87")
    a("s_addc_u32 s13, s13, 0")
    a("s_load_dwordx2 s[84:85], s[12:13], 0")
    srd(a, 24, 4, 4 << 20)
    srd(a, 28, 6, 4 << 20)
    a("s_add_u32 s93, s90, s3")
    a("s_lshl_b32 s94, s93, 12")
    srd_off(a, 32, 10, "s94", 4096)
    srd(a, 36, 18, 1024 * 6144 * 2)
    srd(a, 40, 16, 2048)
    srd_off(a, 44, 22, WS_Y, 4 << 20)
    srd_off(a, 48, 22, WS_MODP, 8 * 24576)
    srd_off(a, 52, 22, WS_MOD, 24576)
    srd(a, 56, 20, 256)
    a("s_lshl_b32 s99, s93, 4")

    p = Prog()
    p.i(f"""
    v_lshrrev_b32 v10, 1, v1
    v_lshlrev_b32 v10, 11, v10
    v_and_b32 v11, 1, v1
    v_lshlrev_b32 v11, 7, v11
    v_add_u32 v10, v10, v11
    v_mov_b32 v11, {BIG}
    v_cmp_gt_u32 vcc, 32, v1
    s_lshl_b32 s94, s89, 6
    s_lshl_b32 s95, s3, 4
    s_add_u32 s94, s94, s95
    v_cndmask_b32 v10, v11, v10, vcc
    s_lshl_b32 s94, s94, 11
    s_lshl_b32 s95, s88, 8
    s_add_u32 s94, s94, s95
    """)
    p.vm(f"buffer_load_dword v245, v10, s[24:27], s94 offen {ldflag}", "pf")
    p.vm(f"buffer_load_dword v245, v10, s[28:31], s94 offen {ldflag}", "pf")
    p.i("""
    v_lshlrev_b32 v12, 4, v1
    v_add_u32 v13, -32, v12
    v_add_u32 v14, -16, v12
    v_add_u32 v15, 992, v12
    v_add_u32 v9, 1008, v12
    """)
    SS = 44
    for ps in range(5):
        r = SS + 6 * ps
        if ps == 0:
            p.vm(f"buffer_load_dwordx4 {vr(r,4)}, v13, s[32:35], 0 offen {wflag}", "ssm")
            p.vm(f"buffer_load_dwordx2 {vr(r+4,2)}, v14, s[32:35], 0 offen {wflag}", "ssm")
        else:
            p.vm(f"buffer_load_dwordx4 {vr(r,4)}, v15, s[32:35], 0 offen offset:{1024*(ps-1)} {wflag}", "ssm")
            p.vm(f"buffer_load_dwordx2 {vr(r+4,2)}, v9, s[32:35], 0 offen offset:{1024*(ps-1)} {wflag}", "ssm")
    W = 76; C = 140; SC = 148; GA = 164; T = 172
    p.i(f"""
    v_lshrrev_b32 v10, 3, v1
    v_lshlrev_b32 v11, 5, v10
    s_lshl_b32 s94, s92, 8
    """)
    p.vm(f"buffer_load_dwordx4 {vr(C,4)}, v11, s[40:43], s94 offen", "c")
    p.vm(f"buffer_load_dwordx4 {vr(C+4,4)}, v11, s[40:43], s94 offen offset:16", "c")
    p.i(f"""
    s_mov_b32 s95, {16*12288}
    v_mul_lo_u32 v10, s95, v10
    v_and_b32 v11, 7, v1
    v_lshl_add_u32 v10, v11, 4, v10
    s_mul_i32 s94, s92, {128*12288}
    s_mul_i32 s95, s91, 384
    s_add_u32 s94, s94, s95
    s_lshl_b32 s95, s3, 7
    s_add_u32 s94, s94, s95
    s_cmp_eq_u32 s3, 3
    s_cselect_b32 s94, {BIG}, s94
    """)
    for i in range(16):
        p.vm(f"buffer_load_dwordx4 {vr(W+4*i,4)}, v10, s[36:39], s94 offen {wflag}", "w")
        if i < 15:
            p.i("s_add_u32 s94, s94, 12288")
    p.i(f"""
    v_lshlrev_b32 v2, 12, v1
    v_mov_b32 v3, {BIG}
    v_cmp_eq_u32 vcc, 0, v1
    s_lshl_b32 s96, s3, 18
    s_add_u32 s96, s96, s87
    v_cndmask_b32 v3, v3, v1, vcc
    """)
    G = [16, 30]
    def gather(rho):
        g = G[rho & 1]
        tag = f"R{rho}"
        out = []
        out.append(I(f"s_add_u32 s97, s96, {rho << 20}"))
        out.append(VM(f"buffer_load_dwordx2 {vr(g,2)}, v2, s[24:27], s97 offen {ldflag}", tag))
        out.append(VM(f"buffer_load_dwordx2 {vr(g+2,2)}, v2, s[24:27], s97 offen offset:2048 {ldflag}", tag))
        out.append(VM(f"buffer_load_dwordx2 {vr(g+4,2)}, v2, s[28:31], s97 offen {ldflag}", tag))
        out.append(VM(f"buffer_load_dwordx2 {vr(g+6,2)}, v2, s[28:31], s97 offen offset:2048 {ldflag}", tag))
        out.append(I("s_sub_u32 s98, s97, 2048"))
        out.append(VM(f"buffer_load_dwordx2 {vr(g+8,2)}, v3, s[24:27], s98 offen {ldflag}", tag))
        out.append(I("s_sub_u32 s98, s97, 6144"))
        out.append(VM(f"buffer_load_dwordx2 {vr(g+10,2)}, v3, s[24:27], s98 offen offset:2048 {ldflag}", tag))
        out.append(VM(f"buffer_load_dwordx2 {vr(g+12,2)}, v3, s[24:27], s98 offen {ldflag}", tag))
        return out
    p.extend(gather(0))
    p.extend(gather(1))
    p.i(f"""
    v_and_b32 v10, 15, v1
    v_lshrrev_b32 v11, 4, v1
    s_mul_i32 s94, s3, {K1_URW}
    s_add_u32 s94, s94, {K1_UR}
    v_lshlrev_b32 v12, 5, v10
    v_lshlrev_b32 v13, 4, v11
    v_sub_u32 v5, v13, v12
    v_add_u32 v5, 480, v5
    v_add_u32 v5, s94, v5
    v_lshlrev_b32 v13, 3, v11
    v_add_u32 v8, v12, v13
    v_sub_u32 v8, 504, v8
    v_add_u32 v8, s94, v8
    v_lshrrev_b32 v13, 1, v11
    v_lshl_add_u32 v13, v10, 1, v13
    v_lshlrev_b32 v7, 14, v13
    v_and_b32 v13, 1, v11
    v_lshl_add_u32 v7, v13, 3, v7
    v_add_u32 v13, 1, v10
    v_and_b32 v14, 3, v13
    v_and_b32 v13, -4, v13
    v_lshl_add_u32 v13, v11, 3, v13
    v_mul_u32_u24 v14, {K1_CP}, v14
    v_lshl_add_u32 v6, v13, 1, v14
    s_mul_i32 s95, s3, {K1_KCW}
    s_add_u32 s95, s95, {K1_KC}
    v_add_u32 v6, s95, v6
    v_lshlrev_b32 v4, 2, v1
    v_sub_u32 v4, {K1_UR + 1020}, v4
    s_lshl_b32 s98, s3, 8
    v_subrev_u32 v4, s98, v4
    v_lshlrev_b32 v12, 3, v1
    v_add_u32 v12, s94, v12
    v_mov_b32 v14, 0
    v_mov_b32 v15, 0
    """)
    p.lg("ds_write_b64 v12, v[14:15] offset:4096", "z")
    p.wlg("ALL")
    for i in range(8):
        p.i(f"s_lshl_b32 s{68+2*i}, s{60+i}, 16")
        p.i(f"s_and_b32 s{69+2*i}, s{60+i}, 0xffff0000")
    p.i("""
    s_cmp_ge_u32 s3, 2
    s_cselect_b32 s86, s85, s84
    s_bitcmp1_b32 s3, 0
    s_cselect_b32 s93, 0, 16
    s_lshl_b32 s86, s86, s93
    s_and_b32 s86, s86, 0xffff0000
    """)
    p.i("v_lshlrev_b32 v12, 4, v1")
    p.i("v_add_u32 v12, s95, v12")
    p.wvm("ssm")
    for ps in range(5):
        r = SS + 6 * ps
        t = T + 12 * (ps % 2)
        for i in range(4):
            p.i(f"v_alignbit_b32 v{t+i}, v{r+i+1}, v{r+i}, 16")
        for i in range(4):
            p.i(f"v_mov_b32 v{t+4+i}, v{r+i+1}")
        for i in range(4):
            p.i(f"v_alignbit_b32 v{t+8+i}, v{r+i+2}, v{r+i+1}, 16")
        if ps == 4:
            p.i("s_mov_b64 exec, 15")
        p.lg(f"ds_write_b128 v12, {vr(r,4)} offset:{1024*ps}", "kc")
        p.lg(f"ds_write_b128 v12, {vr(t,4)} offset:{1024*ps+K1_CP}", "kc")
        p.lg(f"ds_write_b128 v12, {vr(t+4,4)} offset:{1024*ps+2*K1_CP}", "kc")
        p.lg(f"ds_write_b128 v12, {vr(t+8,4)} offset:{1024*ps+3*K1_CP}", "kc")
        if ps == 4:
            p.i("s_mov_b64 exec, -1")
        if ps < 3:
            pass
    p.wlg("ALL")
    for n in range(64):
        p.lg(f"ds_read_b64 {ar(4*n,2)}, v6 offset:{64*n}", "A")
        p.lg(f"ds_read_b64 {ar(4*n+2,2)}, v6 offset:{64*n+8}", "A")
    p.wvm("c")
    for i in range(8):
        p.i(f"v_lshlrev_b32 v{SC+2*i}, 16, v{C+i}")
        p.i(f"v_and_b32 v{SC+2*i+1}, 0xffff0000, v{C+i}")
    for i in range(16):
        p.i(f"v_mul_f32 v{T+i}, 0xbfb8aa3b, v{SC+i}")
    for i in range(16):
        p.i(f"v_exp_f32 v{T+i}, v{T+i}")
    for i in range(16):
        p.i(f"v_add_f32 v{T+i}, 1.0, v{T+i}")
    for i in range(16):
        p.i(f"v_rcp_f32 v{T+i}, v{T+i}")
    for i in range(16):
        p.i(f"v_mul_f32 v{T+i}, v{SC+i}, v{T+i}")
    for i in range(8):
        p.i(f"v_cvt_pk_bf16_f32 v{C+i}, v{T+2*i}, v{T+2*i+1}")
    for i in range(8):
        p.i(f"v_lshlrev_b32 v{SC+2*i}, 16, v{C+i}")
        p.i(f"v_and_b32 v{SC+2*i+1}, 0xffff0000, v{C+i}")
    p.wvm("w")
    for i in range(16):
        for e in range(4):
            p.i(f"v_lshlrev_b32 v{T+2*e}, 16, v{W+4*i+e}")
            p.i(f"v_and_b32 v{T+2*e+1}, 0xffff0000, v{W+4*i+e}")
        for e in range(8):
            if i == 0:
                p.i(f"v_mul_f32 v{GA+e}, v{SC+i}, v{T+e}")
            else:
                p.i(f"v_fmac_f32 v{GA+e}, v{SC+i}, v{T+e}")
    p.i("s_nop 1")
    for i in range(4):
        p.i(f"v_permlane32_swap_b32 v{GA+i}, v{GA+i+4}")
    for i in range(4):
        p.i(f"v_add_f32 v{GA+i}, v{GA+i}, v{GA+i+4}")
    p.i("s_nop 1")
    for i in range(2):
        p.i(f"v_permlane16_swap_b32 v{GA+i}, v{GA+i+2}")
    for i in range(2):
        p.i(f"v_add_f32 v{GA+i}, v{GA+i}, v{GA+i+2}")
    p.i(f"""
    v_and_b32 v10, 7, v1
    v_lshrrev_b32 v11, 4, v1
    v_add_f32_dpp v{GA}, v{GA}, v{GA} row_ror:8 row_mask:0xf bank_mask:0xf
    v_add_f32_dpp v{GA+1}, v{GA+1}, v{GA+1} row_ror:8 row_mask:0xf bank_mask:0xf
    v_lshlrev_b32 v10, 5, v10
    v_lshl_add_u32 v10, v11, 3, v10
    s_lshl_b32 s94, s3, 8
    v_add_u32 v10, s94, v10
    """)
    p.lg(f"ds_write_b64 v10, {vr(GA,2)} offset:{K1_GP}", "gp")
    p.i(f"""
    v_lshlrev_b32 v12, 4, v1
    v_mov_b32 v13, {BIG}
    v_cmp_gt_u32 vcc, 48, v1
    s_mul_i32 s93, s91, 768
    s_mul_i32 s94, s92, 24576
    v_cndmask_b32 v13, v13, v12, vcc
    s_add_u32 s94, s94, s93
    s_cmp_eq_u32 s3, 3
    s_cselect_b32 s94, s94, {BIG}
    s_lshl_b32 s95, s91, 2
    s_cmp_eq_u32 s3, 3
    s_cselect_b32 s95, s95, {BIG}
    v_mov_b32 v244, 1
    """)
    B = [76, 108]
    ACC = 212
    L = 140
    def kv(rho):
        g = G[rho & 1]
        k0, k1, v0, v1, h1, h2, h3 = g, g+2, g+4, g+6, g+8, g+10, g+12
        p.wvm(f"R{rho}")
        dp = "wave_shr:1 row_mask:0xf bank_mask:0xf"
        p.i(f"v_mov_b32_dpp v{h1}, v{k1} {dp}")
        p.i(f"v_mov_b32_dpp v{h1+1}, v{k1+1} {dp}")
        p.i(f"v_mov_b32_dpp v{h2}, v{k0} {dp}")
        p.i(f"v_mov_b32_dpp v{h2+1}, v{k0+1} {dp}")
        p.i(f"v_mov_b32_dpp v{h3}, v{h1} {dp}")
        p.i(f"v_mov_b32_dpp v{h3+1}, v{h1+1} {dp}")
        for ch in range(4):
            t = T + 10 * ch
            srcs = [k1, k0, h1, h2, h3, v0, v1]
            for i, s in enumerate(srcs):
                if ch & 1:
                    p.i(f"v_and_b32 v{t+i}, 0xffff0000, v{s+(ch>>1)}")
                else:
                    p.i(f"v_lshlrev_b32 v{t+i}, 16, v{s+(ch>>1)}")
            tp = 68 + 4 * ch
            p.i(f"v_mul_f32 v{t+7}, s{tp+3}, v{t+4}")
            p.i(f"v_mul_f32 v{t+8}, s{tp+3}, v{t+3}")
            for j in (2, 1, 0):
                p.i(f"v_fmac_f32 v{t+7}, s{tp+j}, v{t+1+j}")
                p.i(f"v_fmac_f32 v{t+8}, s{tp+j}, v{t+j}")
            p.i(f"v_mul_f32 v{t+7}, v{t+7}, v{t+5}")
            p.i(f"v_mul_f32 v{t+8}, v{t+8}, v{t+6}")
            p.i(f"v_cvt_pk_bf16_f32 v{t+9}, v{t+8}, v{t+7}")
            p.lg(f"ds_write_b32 v4, v{t+9} offset:{ch*K1_URW + (3-rho)*1024}", "u")
        p.wlg("ALL")
        p.i("s_barrier")
    def breads(b):
        for r in range(8):
            z = 8 * b - r
            p.lg(f"ds_read_b128 {vr(B[b&1]+4*r,4)}, v5 offset:{64*(56-z)}", f"B{b}")
    def mfmas(b):
        p.wlg(f"B{b}")
        for aa in range(8 - b):
            c = aa + b
            for r in range(8):
                n = 8 * aa + r
                cs = "0" if (b == 0 and r == 0) else vr(ACC+4*c, 4)
                p.i(f"v_mfma_f32_16x16x32_bf16 {vr(ACC+4*c,4)}, {ar(4*n,4)}, {vr(B[b&1]+4*r,4)}, {cs}")
    def uread(c):
        e = 246 + 4 * (c & 1)
        p.lg(f"ds_read_b64 {vr(e,2)}, v8 offset:{512*(7-c)}", f"U{c}")
    def epi(c):
        e = 246 + 4 * (c & 1)
        ac = ACC + 4 * c
        p.wlg(f"U{c}")
        p.i(f"""
        v_and_b32 v{T}, 0xffff0000, v{e+1}
        v_lshlrev_b32 v{T+1}, 16, v{e+1}
        v_and_b32 v{T+2}, 0xffff0000, v{e}
        v_lshlrev_b32 v{T+3}, 16, v{e}
        """)
        for i in range(4):
            p.i(f"v_fma_f32 v{T+i}, s86, v{T+i}, v{ac+i}")
        p.i(f"v_cvt_pk_bf16_f32 v{e+2}, v{T}, v{T+1}")
        p.i(f"v_cvt_pk_bf16_f32 v{e+3}, v{T+2}, v{T+3}")
        p.i(f"s_add_u32 s98, s99, {c*524288}")
        p.vm(f"buffer_store_dwordx2 {vr(e+2,2)}, v7, s[44:47], s98 offen", "y")
    for rho in range(4):
        kv(rho)
        b0, b1 = 2 * rho, 2 * rho + 1
        breads(b0)
        if rho == 0:
            p.lg(f"ds_read_b128 {vr(L,4)}, v12 offset:{K1_GP}", "gpr")
        breads(b1)
        uread(b0); uread(b1)
        if rho == 0:
            p.wlg("gpr")
            p.vm(f"buffer_store_dwordx4 {vr(L,4)}, v13, s[48:51], s94 offen sc1", "S")
        if rho == 1:
            p.wvm("S")
            p.vm("buffer_atomic_add v244, v3, s[56:59], s95 offen sc0", "At")
        if rho == 2:
            p.wvm("At")
            p.i(f"""
            v_readfirstlane_b32 s95, v244
            s_cmp_eq_u32 s3, 3
            s_cselect_b32 s95, s95, 0
            s_cmp_eq_u32 s95, 7
            s_cselect_b32 s93, s93, {BIG}
            s_mov_b32 s94, s93
            """)
            for kk in range(8):
                p.vm(f"buffer_load_dwordx4 {vr(L+4*kk,4)}, v13, s[48:51], s94 offen sc1", "L")
                if kk < 7:
                    p.i("s_add_u32 s94, s94, 24576")
        if rho < 2:
            p.extend(gather(rho + 2))
        mfmas(b0)
        mfmas(b1)
        if rho == 3:
            p.i("s_nop 7")
        epi(b0)
        epi(b1)
    p.wvm("L")
    for kk in range(1, 8):
        for e in range(4):
            p.i(f"v_add_f32 v{L+e}, v{L+e}, v{L+4*kk+e}")
    p.i(f"""
    v_cvt_pk_bf16_f32 v{T}, v{L}, v{L+1}
    v_cvt_pk_bf16_f32 v{T+1}, v{L+2}, v{L+3}
    v_lshlrev_b32 v{L}, 16, v{T}
    v_and_b32 v{L+1}, 0xffff0000, v{T}
    v_lshlrev_b32 v{L+2}, 16, v{T+1}
    v_and_b32 v{L+3}, 0xffff0000, v{T+1}
    """)
    p.vm(f"buffer_store_dwordx4 {vr(L,4)}, v13, s[52:55], s93 offen", "m")
    p.emit(a)
    a(f"{name}_end:")
    a("s_endpgm")
    return kernel_desc(name, 512, 100, 256)
```

```python
from asmlib import *
from k1 import WS_MOD, WS_Y, WS_X1, WS_H2, BIG

K2_LDS = 1024

def gen_k2(a, name="ln_kernel", qflag="nt"):
    a(kernel_head(name))
    a("s_cmp_ge_u32 s2, 256")
    a(f"s_cbranch_scc1 {name}_end")
    a("s_load_dwordx2 s[4:5], s[0:1], 0")
    a("s_load_dwordx2 s[6:7], s[0:1], 104")
    a("v_lshrrev_b32 v9, 6, v0")
    a("v_and_b32 v1, 63, v0")
    a("v_readfirstlane_b32 s3, v9")
    a("v_lshlrev_b32 v2, 3, v0")
    a("v_lshlrev_b32 v3, 6, v0")
    a("v_lshlrev_b32 v4, 4, v0")
    a("s_lshl_b32 s28, s2, 14")
    a("s_waitcnt lgkmcnt(0)")
    srd(a, 8, 4, 4 << 20)
    srd_off(a, 12, 6, WS_Y, 4 << 20)
    srd_off(a, 16, 6, WS_MOD, 24576)
    srd_off(a, 20, 6, WS_X1, 4 << 20)
    srd_off(a, 24, 6, WS_H2, 4 << 20)
    p = Prog()
    QR = 16
    YR = 32
    M = 48
    X = 72
    Y = 104
    V = 136
    T = 152
    NM = 168
    PK = 184
    for r in range(8):
        if r % 2 == 0:
            p.i(f"s_add_u32 s29, s28, {r*2048}")
        p.vm(f"buffer_load_dwordx2 {vr(QR+2*r,2)}, v2, s[8:11], s29 offen offset:{(r%2)*2048} {qflag}", "q")
    for c in range(4):
        p.vm(f"buffer_load_dwordx4 {vr(YR+4*c,4)}, v3, s[12:15], s28 offen offset:{16*c}", "y")
    for i in range(5):
        p.i(f"s_mov_b32 s29, {i*4096}")
        p.vm(f"buffer_load_dwordx4 {vr(M+4*i,4)}, v4, s[16:19], s29 offen", "m")
    p.i(f"""
    v_lshrrev_b32 v5, 4, v1
    v_lshlrev_b32 v5, 4, v5
    s_lshl_b32 s29, s3, 6
    v_add_u32 v5, s29, v5
    v_and_b32 v6, 15, v1
    v_lshlrev_b32 v6, 2, v6
    """)
    p.i(f"""
    v_lshrrev_b32 v7, 3, v0
    v_lshlrev_b32 v7, 10, v7
    v_and_b32 v8, 3, v0
    v_lshl_add_u32 v7, v8, 8, v7
    v_bfe_u32 v8, v0, 2, 1
    v_lshl_add_u32 v7, v8, 3, v7
    s_lshr_b32 s30, s2, 1
    s_lshl_b32 s30, s30, 15
    s_and_b32 s31, s2, 1
    s_lshl_b32 s31, s31, 7
    s_add_u32 s30, s30, s31
    """)
    def stats(lds_off, sbase):
        for r in range(8):
            x = X + 4 * r
            p.i(f"v_pk_add_f32 {vr(T+2*r,2)}, {vr(x,2)}, {vr(x+2,2)}")
        for r in range(8):
            p.i(f"v_add_f32 v{V+r}, v{T+2*r}, v{T+2*r+1}")
        for r in range(8):
            x = X + 4 * r
            p.i(f"v_pk_mul_f32 {vr(T+2*r,2)}, {vr(x,2)}, {vr(x,2)}")
        for r in range(8):
            x = X + 4 * r
            p.i(f"v_pk_fma_f32 {vr(T+2*r,2)}, {vr(x+2,2)}, {vr(x+2,2)}, {vr(T+2*r,2)}")
        for r in range(8):
            p.i(f"v_add_f32 v{V+8+r}, v{T+2*r}, v{T+2*r+1}")
        p.i("s_nop 1")
        for i in range(8):
            p.i(f"v_permlane32_swap_b32 v{V+i}, v{V+i+8}")
        for i in range(8):
            p.i(f"v_add_f32 v{V+i}, v{V+i}, v{V+i+8}")
        p.i("s_nop 1")
        for i in range(4):
            p.i(f"v_permlane16_swap_b32 v{V+i}, v{V+i+4}")
        for i in range(4):
            p.i(f"v_add_f32 v{V+i}, v{V+i}, v{V+i+4}")
        for sh in (8, 4, 2, 1):
            for i in range(4):
                p.i(f"v_add_f32_dpp v{V+i}, v{V+i}, v{V+i} row_ror:{sh} row_mask:0xf bank_mask:0xf")
        p.lg(f"ds_write_b128 v5, {vr(V,4)} offset:{lds_off}", "sw")
        p.wlg("ALL")
        p.i("s_barrier")
        p.lg(f"ds_read2_b32 {vr(T,2)}, v6 offset0:{lds_off//4} offset1:{lds_off//4+16}", "sr")
        p.lg(f"ds_read2_b32 {vr(T+2,2)}, v6 offset0:{lds_off//4+32} offset1:{lds_off//4+48}", "sr")
        p.wlg("ALL")
        p.i(f"""
        v_add_f32 v{T}, v{T}, v{T+1}
        v_add_f32 v{T+2}, v{T+2}, v{T+3}
        v_add_f32 v{T}, v{T}, v{T+2}
        v_mul_f32 v{T}, 0x3a800000, v{T}
        s_nop 1
        v_mov_b32_dpp v{T+1}, v{T} row_ror:8 row_mask:0xf bank_mask:0xf
        v_fma_f32 v{T+2}, -v{T}, v{T}, v{T+1}
        v_max_f32 v{T+2}, 0, v{T+2}
        v_add_f32 v{T+2}, 0x3727c5ac, v{T+2}
        v_rsq_f32 v{T+2}, v{T+2}
        s_nop 0
        v_mul_f32 v{T+3}, -v{T}, v{T+2}
        s_nop 0
        """)
        for r in range(8):
            p.i(f"v_readlane_b32 s{sbase+2*r}, v{T+2}, {r}")
        for r in range(8):
            p.i(f"v_readlane_b32 s{sbase+2*r+1}, v{T+3}, {r}")
        p.i("s_nop 1")
        for r in range(8):
            p.i(f"v_mov_b32 v{NM+2*r}, s{sbase+2*r+1}")
    def unpack_row(dst, src):
        p.i(f"v_lshlrev_b32 v{dst}, 16, v{src}")
        p.i(f"v_and_b32 v{dst+1}, 0xffff0000, v{src}")
        p.i(f"v_lshlrev_b32 v{dst+2}, 16, v{src+1}")
        p.i(f"v_and_b32 v{dst+3}, 0xffff0000, v{src+1}")
    p.wvm("q")
    for r in range(8):
        unpack_row(X + 4 * r, QR + 2 * r)
    stats(0, 32)
    p.wvm("m")
    for c in range(4):
        for h in range(4):
            p.i(f"v_lshlrev_b32 v{Y+4*(2*h)+c}, 16, v{YR+4*c+h}")
            p.i(f"v_and_b32 v{Y+4*(2*h+1)+c}, 0xffff0000, v{YR+4*c+h}")
    for base in (M + 4, M + 16):
        for e in range(4):
            p.i(f"v_add_f32 v{base+e}, 1.0, v{base+e}")
        p.i(f"v_cvt_pk_bf16_f32 v{T}, v{base}, v{base+1}")
        p.i(f"v_cvt_pk_bf16_f32 v{T+1}, v{base+2}, v{base+3}")
        unpack_row(base, T)
    SA, CA, GA, SB, CB = M, M + 4, M + 8, M + 12, M + 16
    H = 200
    for r in range(8):
        for h in (0, 2):
            x = X + 4 * r + h
            p.i(f"v_pk_fma_f32 {vr(H+4*r+h,2)}, {vr(x,2)}, {sr(32+2*r,2)}, {vr(NM+2*r,2)} op_sel_hi:[1,0,0]")
    for r in range(8):
        for h in (0, 2):
            t = H + 4 * r + h
            p.i(f"v_pk_fma_f32 {vr(t,2)}, {vr(t,2)}, {vr(CA+h,2)}, {vr(SA+h,2)}")
    for r in range(8):
        for h in (0, 2):
            t = H + 4 * r + h
            p.i(f"v_pk_mul_f32 {vr(t,2)}, {vr(t,2)}, {vr(Y+4*r+h,2)}")
    for r in range(8):
        for h in (0, 2):
            t = H + 4 * r + h
            p.i(f"v_pk_fma_f32 {vr(t,2)}, {vr(t,2)}, {vr(GA+h,2)}, {vr(X+4*r+h,2)}")
    for r in range(8):
        p.i(f"v_cvt_pk_bf16_f32 v{PK+2*r}, v{H+4*r}, v{H+4*r+1}")
        p.i(f"v_cvt_pk_bf16_f32 v{PK+2*r+1}, v{H+4*r+2}, v{H+4*r+3}")
    for r in range(8):
        if r % 2 == 0:
            p.i(f"s_add_u32 s29, s28, {r*2048}")
        p.vm(f"buffer_store_dwordx2 {vr(PK+2*r,2)}, v2, s[20:23], s29 offen offset:{(r%2)*2048}", "x1")
    for r in range(8):
        unpack_row(X + 4 * r, PK + 2 * r)
    stats(256, 48)
    for r in range(8):
        for h in (0, 2):
            x = X + 4 * r + h
            p.i(f"v_pk_fma_f32 {vr(H+4*r+h,2)}, {vr(x,2)}, {sr(48+2*r,2)}, {vr(NM+2*r,2)} op_sel_hi:[1,0,0]")
    for r in range(8):
        for h in (0, 2):
            t = H + 4 * r + h
            p.i(f"v_pk_fma_f32 {vr(t,2)}, {vr(t,2)}, {vr(CB+h,2)}, {vr(SB+h,2)}")
    for r in range(8):
        p.i(f"v_cvt_pk_bf16_f32 v{QR+2*r}, v{H+4*r}, v{H+4*r+1}")
        p.i(f"v_cvt_pk_bf16_f32 v{QR+2*r+1}, v{H+4*r+2}, v{H+4*r+3}")
    for r in range(8):
        p.vm(f"buffer_store_dwordx2 {vr(QR+2*r,2)}, v7, s[24:27], s30 offen offset:{16*r}", "h2")
    p.emit(a)
    a(f"{name}_end:")
    a("s_endpgm")
    return kernel_desc(name, 232, 70, 232)
```

```python
from asmlib import *
from k1 import WS_MOD, WS_X1, WS_H2, WS_H, BIG

class Weave:
    def __init__(self):
        self.mf = []
        self.pre = {}
        self.post = {}
        self.queue = []
    def add_pre(self, i, item): self.pre.setdefault(i, []).append(item)
    def add_post(self, i, item): self.post.setdefault(i, []).append(item)
    def emit(self, p, streams, cap=2):
        pos = [0] * len(streams)
        n = len(self.mf)
        for i in range(n):
            for it in self.pre.get(i, []):
                p.items.append(it)
            p.items.append(I(self.mf[i]))
            used = 0
            for it in self.post.get(i, []):
                p.items.append(it); used += 1
            for s, st in enumerate(streams):
                while pos[s] < len(st) and st[pos[s]][0] <= i and (used < cap or st[pos[s]][1] <= i):
                    p.items.append(st[pos[s]][2]); used += st[pos[s]][3]; pos[s] += 1
        for s, st in enumerate(streams):
            while pos[s] < len(st):
                p.items.append(st[pos[s]][2]); pos[s] += 1

def tr_addr_setup(a, base_regs, tmp):
    b0 = base_regs[0]
    a(f"""v_lshrrev_b32 v{tmp}, 2, v1
v_lshlrev_b32 v{b0}, 7, v{tmp}
v_lshrrev_b32 v{tmp}, 3, v1
v_and_b32 v{tmp}, 3, v{tmp}
v_lshl_add_u32 v{b0}, v{tmp}, 5, v{b0}
v_and_b32 v{tmp}, 3, v1
v_lshl_add_u32 v{b0}, v{tmp}, 3, v{b0}""")
    for t in range(1, 4):
        a(f"v_xor_b32 v{base_regs[t]}, {32*t}, v{b0}")

def dma_addr_setup(a, regs, tmp, tmp2, rowbytes, stmp):
    r0 = regs[0]
    a(f"""v_lshrrev_b32 v{tmp}, 3, v1
s_mov_b32 s{stmp}, {rowbytes}
v_mul_lo_u32 v{r0}, s{stmp}, v{tmp}
v_lshrrev_b32 v{tmp}, 4, v1
v_lshlrev_b32 v{tmp}, 1, v{tmp}
v_and_b32 v{tmp2}, 7, v1
v_xor_b32 v{tmp}, v{tmp}, v{tmp2}
v_lshl_add_u32 v{r0}, v{tmp}, 4, v{r0}""")
    for i in range(1, 4):
        a(f"v_add_u32 v{regs[i]}, {i*(8*rowbytes-1024)}, v{r0}")

K3_LDS = 163840

def gen_k3(a, name="gemm1_kernel", wflag="", hflag="", LOOK=2):
    R = 5
    a(kernel_head(name))
    a("s_cmp_ge_u32 s2, 256")
    a(f"s_cbranch_scc1 {name}_end")
    a("s_load_dwordx2 s[4:5], s[0:1], 56")
    a("s_load_dwordx2 s[6:7], s[0:1], 104")
    a("v_lshrrev_b32 v9, 6, v0")
    a("v_and_b32 v1, 63, v0")
    a("v_readfirstlane_b32 s3, v9")
    a("""s_and_b32 s20, s2, 7
s_lshr_b32 s21, s2, 3
s_lshr_b32 s22, s20, 1
s_lshl_b32 s22, s22, 2
s_lshr_b32 s23, s21, 3
s_add_u32 s22, s22, s23
s_and_b32 s23, s20, 1
s_lshl_b32 s23, s23, 3
s_and_b32 s24, s21, 7
s_add_u32 s23, s23, s24""")
    a("""s_mul_i32 s24, s23, 448
s_and_b32 s25, s23, 1
s_lshl_b32 s25, s25, 6
s_add_u32 s26, s24, s25
s_add_u32 s27, s26, 256
s_sub_u32 s28, s24, 64
s_add_u32 s29, s24, 384
s_cmp_eq_u32 s25, 0
s_cselect_b32 s28, s29, s28""")
    TRB = [2, 3, 4, 5]
    TRH = [10, 11, 12, 13]
    TRX = [14, 15, 16, 17]
    DM = [6, 7, 8, 18]
    tr_addr_setup(a, TRB, 9)
    for t in range(4):
        a(f"v_add_u32 v{TRH[t]}, 0x10000, v{TRB[t]}")
        a(f"v_add_u32 v{TRX[t]}, 0x20000, v{TRB[t]}")
    dma_addr_setup(a, DM, 9, 19, 7168, 30)
    a("v_lshlrev_b32 v20, 4, v1")
    a("v_add_u32 v21, 0x8000, v20")
    a(f"v_add_u32 v22, {112*1024}, v20")
    a("s_waitcnt lgkmcnt(0)")
    srd(a, 8, 4, 1024 * 3584 * 2)
    srd_off(a, 12, 6, WS_H2, 4 << 20)
    srd_off(a, 16, 6, WS_H, 2048 * 3584 * 2)
    a("""s_lshl_b32 s30, s22, 3
s_lshl_b32 s31, s3, 1
s_add_u32 s30, s30, s31
s_mul_i32 s33, s30, 114688
s_lshl_b32 s30, s30, 15
s_lshl_b32 s32, s3, 12""")
    a(f"""s_lshr_b32 s34, s3, 1
s_mul_i32 s34, s34, {32*7168}
s_and_b32 s35, s3, 1
s_lshl_b32 s35, s35, 7
s_add_u32 s34, s34, s35
s_add_u32 s34, s34, s26
s_mul_i32 s35, s3, {32*7168}
s_add_u32 s36, s35, s28
s_add_u32 s35, s35, s27""")
    a("""s_lshl_b32 s37, s26, 4
s_add_u32 s37, s37, s33
s_lshl_b32 s38, s27, 4
s_add_u32 s38, s38, s33
s_add_u32 s39, s28, s25
s_lshl_b32 s39, s39, 4
s_add_u32 s39, s39, s33""")
    G3B = {0: [24, 25], 1: [26, 27], 2: [28, 29]}
    for k, src in enumerate((TRB, TRH, TRX)):
        a(f"v_xor_b32 v{G3B[k][0]}, s25, v{src[0]}")
        a(f"v_xor_b32 v{G3B[k][1]}, s25, v{src[1]}")

    ACC = {1: 32, 2: 96, 3: 128}
    BF = [144, 160, 176]
    T = 192
    PKR = 208

    stages = []
    for s in range(8): stages.append((1, s))
    for s in range(4): stages.append((2, s))
    for s in range(4): stages.append((3, s))
    NS = len(stages)

    def loads(si):
        G, s = stages[si]
        slot = si % R
        out = []
        tag = f"S{si}"
        if G == 1:
            for mt in range(2):
                for kk in range(4):
                    ks = 4 * s + kk
                    out.append(VM(f"buffer_load_dwordx4 {ar(128*mt+4*ks,4)}, v{20+mt}, s[12:15], s30 offen offset:{1024*kk}", tag))
            out.append(I("s_add_u32 s30, s30, 4096"))
        sreg = {1: 34, 2: 35, 3: 36}[G]
        step = {1: 64 * 7168, 2: 128 * 7168, 3: 128 * 7168}[G]
        for j in range(2):
            out.append(I(f"s_add_u32 m0, s32, {slot*32768 + j*16384}"))
            out.append(I("s_nop 0") if False else None)
            for i in range(4):
                out.append(VM(f"buffer_load_dwordx4 v{DM[i]}, s[8:11], s{sreg} offen offset:{1024*i} lds {wflag}", tag))
            out.append(I(f"s_add_u32 s{sreg}, s{sreg}, {step}"))
        return [x for x in out if x is not None]

    groups = []
    for si, (G, s) in enumerate(stages):
        if G == 1:
            for line in range(2):
                for t in range(4):
                    groups.append((si, [(2 * kk + line, 4 * s + kk) for kk in range(4)], t, G, 4 * line + t, s == 0))
        else:
            nt = 4 if G == 2 else 2
            for hq in range(2):
                for t in range(nt):
                    groups.append((si, [(4 * hq + kk, 8 * s + 4 * hq + kk) for kk in range(4)], t, G, t, s == 0 and hq == 0))
    NG = len(groups)

    def reads(gi):
        si, lk, t, G, ai, first = groups[gi]
        slot = si % R
        out = []
        for f, (ls, ks) in enumerate(lk):
            off = slot * 32768 + ls * 4096
            hi = off >> 16
            off &= 0xffff
            base = (G3B[hi][t] if G == 3 else (TRB, TRH, TRX)[hi][t])
            d = BF[gi % 3] + 4 * f
            out.append(LG(f"ds_read_b64_tr_b16 {vr(d,2)}, v{base} offset:{off}", f"G{gi}"))
            out.append(LG(f"ds_read_b64_tr_b16 {vr(d+2,2)}, v{base} offset:{off+2048}", f"G{gi}"))
        return out

    w = Weave()
    for gi, (si, lk, t, G, ai, first) in enumerate(groups):
        nacc = {1: 8, 2: 4, 3: 2}[G]
        for mt in range(2):
            ac = ACC[G] + 4 * (mt * nacc + ai)
            for f, (ls, ks) in enumerate(lk):
                cs = "0" if (first and f == 0) else vr(ac, 4)
                w.mf.append(f"v_mfma_f32_16x16x32_bf16 {vr(ac,4)}, {vr(BF[gi%3]+4*f,4)}, {ar(128*mt+4*ks,4)}, {cs}")
        w.add_pre(8 * gi, WLG(f"G{gi}"))
        if gi + LOOK < NG:
            for j, it in enumerate(reads(gi + LOOK)):
                w.add_post(8 * gi + j, it)
    first_group = {}
    for gi, g in enumerate(groups):
        first_group.setdefault(g[0], gi)
    ldstream = []
    for si in range(1, NS):
        gi = first_group[si] - LOOK
        w.add_pre(8 * gi, WVM(f"S{si}"))
        w.add_pre(8 * gi, I("s_barrier"))
        nxt = si + R - 2
        if nxt < NS:
            its = loads(nxt)
            for it in its:
                ldstream.append((8 * gi, 10**9, it, 1))
    def epi(G, mt, pr, bank):
        nacc = {1: 8, 2: 4, 3: 2}[G]
        a0 = ACC[G] + 4 * (mt * nacc + 2 * pr)
        t = T + 8 * bank
        pk = PKR + 4 * bank
        out = []
        for e in range(8): out.append((I(f"v_mul_f32 v{t+e}, 0xbfb8aa3b, v{a0+e}"), 1))
        for e in range(8): out.append((I(f"v_exp_f32 v{t+e}, v{t+e}"), 2))
        for e in range(8): out.append((I(f"v_add_f32 v{t+e}, 1.0, v{t+e}"), 1))
        for e in range(8): out.append((I(f"v_rcp_f32 v{t+e}, v{t+e}"), 2))
        for e in range(8): out.append((I(f"v_mul_f32 v{t+e}, v{a0+e}, v{t+e}"), 1))
        for e in range(4): out.append((I(f"v_cvt_pk_bf16_f32 v{pk+e}, v{t+2*e}, v{t+2*e+1}"), 1))
        sreg = {1: 37, 2: 38, 3: 39}[G]
        vo = 20 if mt == 0 else 22
        out.append((VM(f"buffer_store_dwordx4 {vr(pk,4)}, v{vo}, s[16:19], s{sreg} offen offset:{1024*pr} {hflag}", "st"), 1))
        return out
    estream = []
    g2start = 8 * first_group[8] + 2
    g3start = 8 * first_group[12] + 2
    bank = 0
    for mt in range(2):
        for pr in range(4):
            for it, cost in epi(1, mt, pr, bank):
                estream.append((g2start, 10**9, it, cost))
            bank ^= 1
    for mt in range(2):
        for pr in range(2):
            for it, cost in epi(2, mt, pr, bank):
                estream.append((g3start, 10**9, it, cost))
            bank ^= 1

    p = Prog()
    for si in range(R - 2 + 1):
        for it in loads(si):
            p.items.append(it)
            if it[0].startswith("s_add_u32 m0"):
                p.i("s_nop 0")
    p.wvm("S0")
    p.i("s_barrier")
    for gi in range(LOOK):
        p.extend(reads(gi))
    w.emit(p, [ldstream, estream], cap=2)
    p.i("s_nop 7")
    for mt in range(2):
        for it, cost in epi(3, mt, 0, bank):
            p.items.append(it)
        bank ^= 1
    fix_m0(p)
    p.emit(a)
    a(f"{name}_end:")
    a("s_endpgm")
    return kernel_desc(name, 512, 48, 256)

def fix_m0(p):
    out = []
    for k, it in enumerate(p.items):
        out.append(it)
        if it[0] and it[0].startswith("s_add_u32 m0"):
            nx = p.items[k + 1]
            if nx[0] is None or " lds" in nx[0]:
                out.append(I("s_nop 0"))
    p.items = out

K4_SLOT = 16384
def gen_k4(a, name="gemm2_kernel", wflag="", R=8, AB=6, LOOK=2):
    NS = 28
    a(kernel_head(name))
    a("s_cmp_ge_u32 s2, 256")
    a(f"s_cbranch_scc1 {name}_end")
    a("s_load_dwordx2 s[4:5], s[0:1], 64")
    a("s_load_dwordx2 s[6:7], s[0:1], 104")
    a("s_load_dwordx2 s[40:41], s[0:1], 88")
    a("v_lshrrev_b32 v9, 6, v0")
    a("v_and_b32 v1, 63, v0")
    a("v_readfirstlane_b32 s3, v9")
    a("""s_and_b32 s20, s2, 7
s_lshr_b32 s21, s2, 3
s_lshr_b32 s22, s20, 1
s_lshl_b32 s22, s22, 2
s_lshr_b32 s23, s21, 3
s_add_u32 s22, s22, s23
s_and_b32 s23, s20, 1
s_lshl_b32 s23, s23, 3
s_and_b32 s24, s21, 7
s_add_u32 s23, s23, s24""")
    TRB = [2, 3, 4, 5]; TRH = [10, 11, 12, 13]
    DM = [6, 7, 8, 18]
    tr_addr_setup(a, TRB, 9)
    for t in range(4):
        a(f"v_add_u32 v{TRH[t]}, 0x10000, v{TRB[t]}")
    dma_addr_setup(a, DM, 9, 19, 2048, 30)
    a("v_lshlrev_b32 v20, 4, v1")
    a(f"v_add_u32 v21, {112*1024}, v20")
    a("""v_and_b32 v9, 15, v1
v_lshlrev_b32 v22, 11, v9
v_lshrrev_b32 v9, 4, v1
v_lshl_add_u32 v22, v9, 3, v22
v_add_u32 v23, 0x8000, v22
v_lshlrev_b32 v24, 4, v9""")
    a("s_waitcnt lgkmcnt(0)")
    srd(a, 8, 4, 3584 * 1024 * 2)
    srd_off(a, 12, 6, WS_H, 2048 * 3584 * 2)
    srd_off(a, 16, 6, WS_X1, 4 << 20)
    srd_off(a, 44, 6, WS_MOD, 24576)
    srd(a, 48, 40, 4 << 20)
    a(f"""s_lshl_b32 s30, s22, 3
s_lshl_b32 s31, s3, 1
s_add_u32 s30, s30, s31
s_lshl_b32 s33, s30, 15
s_mul_i32 s30, s30, 114688
s_lshl_b32 s32, s3, 12
s_lshl_b32 s34, s3, 16
s_lshl_b32 s35, s23, 7
s_add_u32 s34, s34, s35
s_add_u32 s33, s33, s35
s_lshl_b32 s36, s23, 8
s_add_u32 s36, s36, 20480""")
    ACC = 32
    BF = [64, 80, 96]
    XR = 112
    GB = 128
    T = 144
    def loads(si):
        slot = si % R
        ab = si % AB
        tag = f"S{si}"
        out = []
        out.append(I(f"s_add_u32 m0, s32, {slot*K4_SLOT}"))
        for mt in range(2):
            for kk in range(4):
                out.append(VM(f"buffer_load_dwordx4 {ar(32*ab+16*mt+4*kk,4)}, v{20+mt}, s[12:15], s30 offen offset:{1024*kk}", tag))
        out.append(I("s_add_u32 s30, s30, 4096"))
        for i in range(4):
            out.append(VM(f"buffer_load_dwordx4 v{DM[i]}, s[8:11], s34 offen offset:{1024*i} lds {wflag}", tag))
        out.append(I(f"s_add_u32 s34, s34, {128*2048}"))
        return out
    NG = NS * 4
    def reads(gi):
        si, t = divmod(gi, 4)
        out = []
        for f in range(4):
            off = (si % R) * K4_SLOT + f * 4096
            base = (TRB, TRH)[off >> 16][t]
            off &= 0xffff
            d = BF[gi % 3] + 4 * f
            out.append(LG(f"ds_read_b64_tr_b16 {vr(d,2)}, v{base} offset:{off}", f"G{gi}"))
            out.append(LG(f"ds_read_b64_tr_b16 {vr(d+2,2)}, v{base} offset:{off+2048}", f"G{gi}"))
        return out
    w = Weave()
    for gi in range(NG):
        si, t = divmod(gi, 4)
        for mt in range(2):
            ac = ACC + 4 * (4 * mt + t)
            for f in range(4):
                cs = "0" if (si == 0 and f == 0) else vr(ac, 4)
                w.mf.append(f"v_mfma_f32_16x16x32_bf16 {vr(ac,4)}, {vr(BF[gi%3]+4*f,4)}, {ar(32*(si%AB)+16*mt+4*f,4)}, {cs}")
        w.add_pre(8 * gi, WLG(f"G{gi}"))
        if gi + LOOK < NG:
            for j, it in enumerate(reads(gi + LOOK)):
                w.add_post(8 * gi + j, it)
    D = min(R - 2, AB - 2)
    ldstream = []
    xl = []
    for mt in range(2):
        for t in range(4):
            xl.append(VM(f"buffer_load_dwordx2 {vr(XR+2*(4*mt+t),2)}, v{22+mt}, s[16:19], s33 offen offset:{32*t}", "x"))
    for t in range(4):
        xl.append(VM(f"buffer_load_dwordx4 {vr(GB+4*t,4)}, v24, s[44:47], s36 offen offset:{64*t}", "x"))
    for si in range(1, NS):
        gi = 4 * si - LOOK
        w.add_pre(8 * gi, WVM(f"S{si}"))
        w.add_pre(8 * gi, I("s_barrier"))
        nxt = si + D
        if nxt < NS:
            for it in loads(nxt):
                ldstream.append((8 * gi, 10**9, it, 1))
        if si == NS - D:
            for it in xl:
                ldstream.append((8 * gi, 10**9, it, 1))
    p = Prog()
    for si in range(D + 1):
        p.extend(loads(si))
    p.wvm("S0")
    p.i("s_barrier")
    for gi in range(LOOK):
        p.extend(reads(gi))
    w.emit(p, [ldstream], cap=2)
    p.wvm("x")
    p.i("s_nop 7")
    for mt in range(2):
        for t in range(4):
            i = 4 * mt + t
            ac = ACC + 4 * i
            x = XR + 2 * i
            tt = T + 4 * (i % 2)
            p.i(f"""
            v_lshlrev_b32 v{tt}, 16, v{x}
            v_and_b32 v{tt+1}, 0xffff0000, v{x}
            v_lshlrev_b32 v{tt+2}, 16, v{x+1}
            v_and_b32 v{tt+3}, 0xffff0000, v{x+1}
            """)
            for e in range(4):
                p.i(f"v_fmac_f32 v{tt+e}, v{GB+4*t+e}, v{ac+e}")
            p.i(f"v_cvt_pk_bf16_f32 v{x}, v{tt}, v{tt+1}")
            p.i(f"v_cvt_pk_bf16_f32 v{x+1}, v{tt+2}, v{tt+3}")
            p.vm(f"buffer_store_dwordx2 {vr(x,2)}, v{22+mt}, s[48:51], s33 offen offset:{32*t}", "o")
    fix_m0(p)
    p.emit(a)
    a(f"{name}_end:")
    a("s_endpgm")
    return kernel_desc(name, 256 + 32 * AB, 56, 256), R * K4_SLOT
```

```python
import sys
from asmlib import *
import k1, k2, k34

HEADER = open("adaLN_cond__ssm_conv_h3__dense_activation_silu__prompt.s.ref").read().split("; Override launch")[0]

def build(opts=None, only=None):
    o = dict(k1_ld="nt", k1_w="nt", k2_q="nt", k3_w="", k3_h="", k4_w="")
    o.update(opts or {})
    body = Asm()
    descs = []
    descs.append(k1.gen_k1(body, ldflag=o["k1_ld"], wflag=o["k1_w"]))
    descs.append(k2.gen_k2(body, qflag=o["k2_q"]))
    descs.append(k34.gen_k3(body, wflag=o["k3_w"], hflag=o["k3_h"]))
    d4, lds4 = k34.gen_k4(body, wflag=o["k4_w"])
    descs.append(d4)
    launches = [("conv_kernel", k1.K1_LDS), ("ln_kernel", k2.K2_LDS), ("gemm1_kernel", k34.K3_LDS), ("gemm2_kernel", lds4)]
    a = Asm()
    a(HEADER.rstrip())
    for n, lds in launches:
        if only and n not in only: continue
        a(f"; @launch kernel={n} grid=(256,1,1) block=(256,1,1) lds={lds}")
    a('.amdgcn_target "amdgcn-amd-amdhsa--gfx950"')
    a(body.text())
    for d in descs:
        a(d)
    return a.text()

if __name__ == "__main__":
    out = sys.argv[1] if len(sys.argv) > 1 else "adaLN_cond__ssm_conv_h3__dense_activation_silu__prompt.s"
    opts = dict(kv.split("=", 1) for kv in sys.argv[2:])
    open(out, "w").write(build(opts))
    print("wrote", out)
```

```python
class Asm:
    def __init__(self):
        self.lines = []
    def __call__(self, s=""):
        for l in s.split("\n"):
            self.lines.append(l)
    def text(self):
        return "\n".join(self.lines) + "\n"

def kernel_head(name):
    return f""".text
.globl {name}
.p2align 8
.type {name},@function
{name}:"""

def kernel_desc(name, vgpr, sgpr, accum, kernarg=112, extra=""):
    return f""".section .rodata,"a"
.p2align 6
.amdhsa_kernel {name}
  .amdhsa_next_free_vgpr {vgpr}
  .amdhsa_next_free_sgpr {sgpr}
  .amdhsa_accum_offset {accum}
  .amdhsa_group_segment_fixed_size 0
  .amdhsa_kernarg_size {kernarg}
  .amdhsa_user_sgpr_count 2
  .amdhsa_user_sgpr_kernarg_segment_ptr 1
  .amdhsa_system_sgpr_workgroup_id_x 1
{extra}.end_amdhsa_kernel
"""

def srd(a, d, b, nbytes):
    a(f"s_mov_b32 s{d}, s{b}")
    a(f"s_and_b32 s{d+1}, s{b+1}, 0xffff")
    a(f"s_mov_b32 s{d+2}, {nbytes}")
    a(f"s_mov_b32 s{d+3}, 0x00020000")

def srd_off(a, d, b, off, nbytes):
    a(f"s_add_u32 s{d}, s{b}, {off}")
    a(f"s_addc_u32 s{d+1}, s{b+1}, 0")
    a(f"s_and_b32 s{d+1}, s{d+1}, 0xffff")
    a(f"s_mov_b32 s{d+2}, {nbytes}")
    a(f"s_mov_b32 s{d+3}, 0x00020000")


class Prog:
    def __init__(self):
        self.items = []
    def i(self, text):
        for l in text.split("\n"):
            l = l.strip()
            if l:
                self.items.append((l, None, None))
    def vm(self, text, tag=None):
        self.items.append((text, 'vm', tag))
    def lg(self, text, tag=None):
        self.items.append((text, 'lg', tag))
    def wvm(self, tag):
        self.items.append((None, 'wvm', tag))
    def wlg(self, tag):
        self.items.append((None, 'wlg', tag))
    def extend(self, items):
        self.items.extend(items)
    def emit(self, a):
        vm = []; lg = []
        vm_done = 0; lg_done = 0
        for text, kind, tag in self.items:
            if kind == 'vm':
                vm.append(tag); a(text)
            elif kind == 'lg':
                lg.append(tag); a(text)
            elif kind == 'wvm':
                if tag == 'ALL':
                    a("s_waitcnt vmcnt(0)"); vm_done = len(vm); continue
                idx = max((k for k, t in enumerate(vm) if t == tag), default=None)
                assert idx is not None, f"no vm op with tag {tag}"
                if idx < vm_done:
                    continue
                n = min(len(vm) - 1 - idx, 63)
                a(f"s_waitcnt vmcnt({n})")
                vm_done = len(vm) - n
            elif kind == 'wlg':
                if tag == 'ALL':
                    a("s_waitcnt lgkmcnt(0)"); lg_done = len(lg); continue
                idx = max((k for k, t in enumerate(lg) if t == tag), default=None)
                assert idx is not None, f"no lg op with tag {tag}"
                if idx < lg_done:
                    continue
                n = min(len(lg) - 1 - idx, 15)
                a(f"s_waitcnt lgkmcnt({n})")
                lg_done = len(lg) - n
            else:
                a(text)
                if text.startswith("s_waitcnt"):
                    raise RuntimeError("raw waitcnt inside Prog: " + text)

def I(text): return (text, None, None)
def VM(text, tag=None): return (text, 'vm', tag)
def LG(text, tag=None): return (text, 'lg', tag)
def WVM(tag): return (None, 'wvm', tag)
def WLG(tag): return (None, 'wlg', tag)

def vr(b, n=1):
    return f"v{b}" if n == 1 else f"v[{b}:{b+n-1}]"
def ar(b, n=1):
    return f"a{b}" if n == 1 else f"a[{b}:{b+n-1}]"
def sr(b, n=1):
    return f"s{b}" if n == 1 else f"s[{b}:{b+n-1}]"


STAMP_WS = 0x2000000
class Stamps:
    def __init__(self, on, kidx, base, n):
        self.on, self.kidx, self.base, self.n = on, kidx, base, n
        self.k = 0
    def item(self, cyc=False):
        if not self.on: return []
        assert self.k < self.n
        r = self.base + 2 * self.k
        self.k += 1
        return [I(f"s_mem{'time' if cyc else 'realtime'} s[{r}:{r+1}]")]
    def flush(self, a, wave_sreg=3, vt=(60, 61), srd=None):
        if not self.on: return
        d = srd
        a("s_waitcnt vmcnt(0) lgkmcnt(0)")
        r = self.base + 2 * self.k
        a(f"s_memrealtime s[{r}:{r+1}]")
        self.k += 1
        a(f"s_load_dwordx2 s[{d}:{d+1}], s[0:1], 104")
        a("s_waitcnt lgkmcnt(0)")
        a(f"s_add_u32 s{d}, s{d}, {STAMP_WS + self.kidx * 0x20000}")
        a(f"s_addc_u32 s{d+1}, s{d+1}, 0")
        a(f"s_and_b32 s{d+1}, s{d+1}, 0xffff")
        a(f"s_mov_b32 s{d+2}, 0x20000")
        a(f"s_mov_b32 s{d+3}, 0x00020000")
        a(f"s_lshl_b32 vcc_lo, s2, 2")
        a(f"s_add_u32 vcc_lo, vcc_lo, s{wave_sreg}")
        a(f"s_lshl_b32 vcc_lo, vcc_lo, 7")
        a(f"v_mov_b32 v{vt[0]}, vcc_lo")
        a("s_mov_b64 exec, 1")
        for k in range(self.k):
            a(f"v_mov_b32 v{vt[1]}, s{self.base + 2*k}")
            a(f"buffer_store_dword v{vt[1]}, v{vt[0]}, s[{d}:{d+3}], 0 offen offset:{4*k}")
            a("s_nop 1")
        a("s_waitcnt vmcnt(0)")
```

```python
from asmlib import *

WS_MOD = 0
WS_MODP = 0x8000
WS_Y = 0x100000
WS_X1 = 0x500000
WS_H2 = 0x900000
WS_H = 0xD00000
BIG = 0x40000000

K1_GP = 0
K1_KC = 1024
K1_CP = 4160
K1_KCW = 4 * K1_CP
K1_UR = K1_KC + 4 * K1_KCW
K1_URW = 4608
K1_LDS = K1_UR + 4 * K1_URW

def gen_k1(a, name="conv_kernel", ldflag="nt", wflag="nt", yflag="", diag=False):
    a(kernel_head(name))
    a("s_cmp_ge_u32 s2, 256")
    a(f"s_cbranch_scc1 {name}_end")
    st = Stamps(diag, 0, 4, 10)
    if diag: a("s_memrealtime s[100:101]")
    a("s_load_dwordx8 s[4:11], s[0:1], 8")
    a("s_load_dwordx2 s[12:13], s[0:1], 40")
    a("s_load_dwordx4 s[16:19], s[0:1], 72")
    a("s_load_dwordx4 s[20:23], s[0:1], 96")
    a("v_lshrrev_b32 v9, 6, v0")
    a("v_and_b32 v1, 63, v0")
    a("v_readfirstlane_b32 s3, v9")
    a("s_and_b32 s88, s2, 7")
    a("s_lshr_b32 s89, s2, 3")
    a("s_lshl_b32 s90, s88, 7")
    a("s_lshl_b32 s93, s89, 2")
    a("s_add_u32 s90, s90, s93")
    a("s_lshl_b32 s87, s90, 1")
    a("s_mov_b32 s91, s89")
    a("s_mov_b32 s92, s88")
    a("s_waitcnt lgkmcnt(0)")
    a("s_lshl_b32 s93, s90, 3")
    a("s_add_u32 s8, s8, s93")
    a("s_addc_u32 s9, s9, 0")
    a("s_load_dwordx8 s[60:67], s[8:9], 0")
    a("s_add_u32 s12, s12, s87")
    a("s_addc_u32 s13, s13, 0")
    a("s_load_dwordx2 s[84:85], s[12:13], 0")
    srd(a, 24, 4, 4 << 20)
    srd(a, 28, 6, 4 << 20)
    a("s_add_u32 s93, s90, s3")
    a("s_lshl_b32 s94, s93, 12")
    srd_off(a, 32, 10, "s94", 4096)
    srd(a, 36, 18, 1024 * 6144 * 2)
    srd(a, 40, 16, 2048)
    srd_off(a, 44, 22, WS_Y, 4 << 20)
    srd_off(a, 48, 22, WS_MODP, 8 * 24576)
    srd_off(a, 52, 22, WS_MOD, 24576)
    srd(a, 56, 20, 256)
    a("s_lshl_b32 s99, s93, 4")

    p = Prog()
    p.i(f"""
    v_lshrrev_b32 v10, 1, v1
    v_lshlrev_b32 v10, 11, v10
    v_and_b32 v11, 1, v1
    v_lshlrev_b32 v11, 7, v11
    v_add_u32 v10, v10, v11
    v_mov_b32 v11, {BIG}
    v_cmp_gt_u32 vcc, 32, v1
    s_lshl_b32 s94, s89, 6
    s_lshl_b32 s95, s3, 4
    s_add_u32 s94, s94, s95
    v_cndmask_b32 v10, v11, v10, vcc
    s_lshl_b32 s94, s94, 11
    s_lshl_b32 s95, s88, 8
    s_add_u32 s94, s94, s95
    """)
    p.vm(f"buffer_load_dword v245, v10, s[24:27], s94 offen {ldflag}", "pf")
    p.vm(f"buffer_load_dword v245, v10, s[28:31], s94 offen {ldflag}", "pf")
    p.i("""
    v_lshlrev_b32 v12, 4, v1
    v_add_u32 v13, -32, v12
    v_add_u32 v14, -16, v12
    v_add_u32 v15, 992, v12
    v_add_u32 v9, 1008, v12
    """)
    SS = 44
    for ps in range(5):
        r = SS + 6 * ps
        if ps == 0:
            p.vm(f"buffer_load_dwordx4 {vr(r,4)}, v13, s[32:35], 0 offen {wflag}", "ssm")
            p.vm(f"buffer_load_dwordx2 {vr(r+4,2)}, v14, s[32:35], 0 offen {wflag}", "ssm")
        else:
            p.vm(f"buffer_load_dwordx4 {vr(r,4)}, v15, s[32:35], 0 offen offset:{1024*(ps-1)} {wflag}", "ssm")
            p.vm(f"buffer_load_dwordx2 {vr(r+4,2)}, v9, s[32:35], 0 offen offset:{1024*(ps-1)} {wflag}", "ssm")
    W = 76; C = 140; SC = 148; GA = 164; T = 172
    p.i(f"""
    v_lshrrev_b32 v10, 3, v1
    v_lshlrev_b32 v11, 5, v10
    s_lshl_b32 s94, s92, 8
    """)
    p.vm(f"buffer_load_dwordx4 {vr(C,4)}, v11, s[40:43], s94 offen", "c")
    p.vm(f"buffer_load_dwordx4 {vr(C+4,4)}, v11, s[40:43], s94 offen offset:16", "c")
    p.i(f"""
    s_mov_b32 s95, {16*12288}
    v_mul_lo_u32 v10, s95, v10
    v_and_b32 v11, 7, v1
    v_lshl_add_u32 v10, v11, 4, v10
    s_mul_i32 s94, s92, {128*12288}
    s_mul_i32 s95, s91, 384
    s_add_u32 s94, s94, s95
    s_lshl_b32 s95, s3, 7
    s_add_u32 s94, s94, s95
    s_cmp_eq_u32 s3, 3
    s_cselect_b32 s94, {BIG}, s94
    """)
    for i in range(16):
        p.vm(f"buffer_load_dwordx4 {vr(W+4*i,4)}, v10, s[36:39], s94 offen {wflag}", "w")
        if i < 15:
            p.i("s_add_u32 s94, s94, 12288")
    p.i(f"""
    v_lshlrev_b32 v2, 12, v1
    v_mov_b32 v3, {BIG}
    v_cmp_eq_u32 vcc, 0, v1
    s_lshl_b32 s96, s3, 18
    s_add_u32 s96, s96, s87
    v_cndmask_b32 v3, v3, v1, vcc
    """)
    G = [16, 30]
    def gather(rho):
        g = G[rho & 1]
        tag = f"R{rho}"
        out = []
        out.append(I(f"s_add_u32 s97, s96, {rho << 20}"))
        out.append(VM(f"buffer_load_dwordx2 {vr(g,2)}, v2, s[24:27], s97 offen {ldflag}", tag))
        out.append(VM(f"buffer_load_dwordx2 {vr(g+2,2)}, v2, s[24:27], s97 offen offset:2048 {ldflag}", tag))
        out.append(VM(f"buffer_load_dwordx2 {vr(g+4,2)}, v2, s[28:31], s97 offen {ldflag}", tag))
        out.append(VM(f"buffer_load_dwordx2 {vr(g+6,2)}, v2, s[28:31], s97 offen offset:2048 {ldflag}", tag))
        out.append(I("s_sub_u32 s98, s97, 2048"))
        out.append(VM(f"buffer_load_dwordx2 {vr(g+8,2)}, v3, s[24:27], s98 offen {ldflag}", tag))
        out.append(I("s_sub_u32 s98, s97, 6144"))
        out.append(VM(f"buffer_load_dwordx2 {vr(g+10,2)}, v3, s[24:27], s98 offen offset:2048 {ldflag}", tag))
        out.append(VM(f"buffer_load_dwordx2 {vr(g+12,2)}, v3, s[24:27], s98 offen {ldflag}", tag))
        return out
    p.extend(gather(0))
    p.extend(gather(1))
    p.i(f"""
    v_and_b32 v10, 15, v1
    v_lshrrev_b32 v11, 4, v1
    s_mul_i32 s94, s3, {K1_URW}
    s_add_u32 s94, s94, {K1_UR}
    v_lshlrev_b32 v12, 5, v10
    v_lshlrev_b32 v13, 4, v11
    v_sub_u32 v5, v13, v12
    v_add_u32 v5, 480, v5
    v_add_u32 v5, s94, v5
    v_lshlrev_b32 v13, 3, v11
    v_add_u32 v8, v12, v13
    v_sub_u32 v8, 504, v8
    v_add_u32 v8, s94, v8
    v_lshrrev_b32 v13, 1, v11
    v_lshl_add_u32 v13, v10, 1, v13
    v_lshlrev_b32 v7, 14, v13
    v_and_b32 v13, 1, v11
    v_lshl_add_u32 v7, v13, 3, v7
    v_add_u32 v13, 1, v10
    v_and_b32 v14, 3, v13
    v_and_b32 v13, -4, v13
    v_lshl_add_u32 v13, v11, 3, v13
    v_mul_u32_u24 v14, {K1_CP}, v14
    v_lshl_add_u32 v6, v13, 1, v14
    s_mul_i32 s95, s3, {K1_KCW}
    s_add_u32 s95, s95, {K1_KC}
    v_add_u32 v6, s95, v6
    v_lshlrev_b32 v4, 2, v1
    v_sub_u32 v4, {K1_UR + 1020}, v4
    s_lshl_b32 s98, s3, 8
    v_subrev_u32 v4, s98, v4
    v_lshlrev_b32 v12, 3, v1
    v_add_u32 v12, s94, v12
    v_mov_b32 v14, 0
    v_mov_b32 v15, 0
    """)
    p.lg("ds_write_b64 v12, v[14:15] offset:4096", "z")
    p.wlg("ALL")
    if diag:
        p.i("s_mov_b32 s4, s100"); st.k = 1
    p.extend(st.item())
    for i in range(8):
        p.i(f"s_lshl_b32 s{68+2*i}, s{60+i}, 16")
        p.i(f"s_and_b32 s{69+2*i}, s{60+i}, 0xffff0000")
    p.i("""
    s_cmp_ge_u32 s3, 2
    s_cselect_b32 s86, s85, s84
    s_bitcmp1_b32 s3, 0
    s_cselect_b32 s93, 0, 16
    s_lshl_b32 s86, s86, s93
    s_and_b32 s86, s86, 0xffff0000
    """)
    p.i("v_lshlrev_b32 v12, 4, v1")
    p.i("v_add_u32 v12, s95, v12")
    p.wvm("ssm")
    p.extend(st.item())
    for ps in range(5):
        r = SS + 6 * ps
        t = T + 12 * (ps % 2)
        for i in range(4):
            p.i(f"v_alignbit_b32 v{t+i}, v{r+i+1}, v{r+i}, 16")
        for i in range(4):
            p.i(f"v_mov_b32 v{t+4+i}, v{r+i+1}")
        for i in range(4):
            p.i(f"v_alignbit_b32 v{t+8+i}, v{r+i+2}, v{r+i+1}, 16")
        if ps == 4:
            p.i("s_mov_b64 exec, 15")
        p.lg(f"ds_write_b128 v12, {vr(r,4)} offset:{1024*ps}", "kc")
        p.lg(f"ds_write_b128 v12, {vr(t,4)} offset:{1024*ps+K1_CP}", "kc")
        p.lg(f"ds_write_b128 v12, {vr(t+4,4)} offset:{1024*ps+2*K1_CP}", "kc")
        p.lg(f"ds_write_b128 v12, {vr(t+8,4)} offset:{1024*ps+3*K1_CP}", "kc")
        if ps == 4:
            p.i("s_mov_b64 exec, -1")
        if ps < 3:
            pass
    p.wlg("ALL")
    for n in range(64):
        p.lg(f"ds_read_b64 {ar(4*n,2)}, v6 offset:{64*n}", "A")
        p.lg(f"ds_read_b64 {ar(4*n+2,2)}, v6 offset:{64*n+8}", "A")
    p.wvm("c")
    for i in range(8):
        p.i(f"v_lshlrev_b32 v{SC+2*i}, 16, v{C+i}")
        p.i(f"v_and_b32 v{SC+2*i+1}, 0xffff0000, v{C+i}")
    for i in range(16):
        p.i(f"v_mul_f32 v{T+i}, 0xbfb8aa3b, v{SC+i}")
    for i in range(16):
        p.i(f"v_exp_f32 v{T+i}, v{T+i}")
    for i in range(16):
        p.i(f"v_add_f32 v{T+i}, 1.0, v{T+i}")
    for i in range(16):
        p.i(f"v_rcp_f32 v{T+i}, v{T+i}")
    for i in range(16):
        p.i(f"v_mul_f32 v{T+i}, v{SC+i}, v{T+i}")
    for i in range(8):
        p.i(f"v_cvt_pk_bf16_f32 v{C+i}, v{T+2*i}, v{T+2*i+1}")
    for i in range(8):
        p.i(f"v_lshlrev_b32 v{SC+2*i}, 16, v{C+i}")
        p.i(f"v_and_b32 v{SC+2*i+1}, 0xffff0000, v{C+i}")
    p.wvm("w")
    p.extend(st.item())
    for i in range(16):
        for e in range(4):
            p.i(f"v_lshlrev_b32 v{T+2*e}, 16, v{W+4*i+e}")
            p.i(f"v_and_b32 v{T+2*e+1}, 0xffff0000, v{W+4*i+e}")
        for e in range(8):
            if i == 0:
                p.i(f"v_mul_f32 v{GA+e}, v{SC+i}, v{T+e}")
            else:
                p.i(f"v_fmac_f32 v{GA+e}, v{SC+i}, v{T+e}")
    p.i("s_nop 1")
    for i in range(4):
        p.i(f"v_permlane32_swap_b32 v{GA+i}, v{GA+i+4}")
    for i in range(4):
        p.i(f"v_add_f32 v{GA+i}, v{GA+i}, v{GA+i+4}")
    p.i("s_nop 1")
    for i in range(2):
        p.i(f"v_permlane16_swap_b32 v{GA+i}, v{GA+i+2}")
    for i in range(2):
        p.i(f"v_add_f32 v{GA+i}, v{GA+i}, v{GA+i+2}")
    p.i(f"""
    v_and_b32 v10, 7, v1
    v_lshrrev_b32 v11, 4, v1
    v_add_f32_dpp v{GA}, v{GA}, v{GA} row_ror:8 row_mask:0xf bank_mask:0xf
    v_add_f32_dpp v{GA+1}, v{GA+1}, v{GA+1} row_ror:8 row_mask:0xf bank_mask:0xf
    v_lshlrev_b32 v10, 5, v10
    v_lshl_add_u32 v10, v11, 3, v10
    s_lshl_b32 s94, s3, 8
    v_add_u32 v10, s94, v10
    """)
    p.lg(f"ds_write_b64 v10, {vr(GA,2)} offset:{K1_GP}", "gp")
    p.i(f"""
    v_lshlrev_b32 v12, 4, v1
    v_mov_b32 v13, {BIG}
    v_cmp_gt_u32 vcc, 48, v1
    s_mul_i32 s93, s91, 768
    s_mul_i32 s94, s92, 24576
    v_cndmask_b32 v13, v13, v12, vcc
    s_add_u32 s94, s94, s93
    s_cmp_eq_u32 s3, 3
    s_cselect_b32 s94, s94, {BIG}
    s_lshl_b32 s95, s91, 2
    s_cmp_eq_u32 s3, 3
    s_cselect_b32 s95, s95, {BIG}
    v_mov_b32 v244, 1
    """)
    B = [76, 108]
    ACC = 212
    L = 140
    def kv(rho):
        g = G[rho & 1]
        k0, k1, v0, v1, h1, h2, h3 = g, g+2, g+4, g+6, g+8, g+10, g+12
        p.wvm(f"R{rho}")
        dp = "wave_shr:1 row_mask:0xf bank_mask:0xf"
        p.i(f"v_mov_b32_dpp v{h1}, v{k1} {dp}")
        p.i(f"v_mov_b32_dpp v{h1+1}, v{k1+1} {dp}")
        p.i(f"v_mov_b32_dpp v{h2}, v{k0} {dp}")
        p.i(f"v_mov_b32_dpp v{h2+1}, v{k0+1} {dp}")
        p.i(f"v_mov_b32_dpp v{h3}, v{h1} {dp}")
        p.i(f"v_mov_b32_dpp v{h3+1}, v{h1+1} {dp}")
        for ch in range(4):
            t = T + 10 * ch
            srcs = [k1, k0, h1, h2, h3, v0, v1]
            for i, s in enumerate(srcs):
                if ch & 1:
                    p.i(f"v_and_b32 v{t+i}, 0xffff0000, v{s+(ch>>1)}")
                else:
                    p.i(f"v_lshlrev_b32 v{t+i}, 16, v{s+(ch>>1)}")
            tp = 68 + 4 * ch
            p.i(f"v_mul_f32 v{t+7}, s{tp+3}, v{t+4}")
            p.i(f"v_mul_f32 v{t+8}, s{tp+3}, v{t+3}")
            for j in (2, 1, 0):
                p.i(f"v_fmac_f32 v{t+7}, s{tp+j}, v{t+1+j}")
                p.i(f"v_fmac_f32 v{t+8}, s{tp+j}, v{t+j}")
            p.i(f"v_mul_f32 v{t+7}, v{t+7}, v{t+5}")
            p.i(f"v_mul_f32 v{t+8}, v{t+8}, v{t+6}")
            p.i(f"v_cvt_pk_bf16_f32 v{t+9}, v{t+8}, v{t+7}")
            p.lg(f"ds_write_b32 v4, v{t+9} offset:{ch*K1_URW + (3-rho)*1024}", "u")
        p.wlg("ALL")
        p.i("s_barrier")
        p.extend(st.item())
    def breads(b):
        for r in range(8):
            z = 8 * b - r
            p.lg(f"ds_read_b128 {vr(B[b&1]+4*r,4)}, v5 offset:{64*(56-z)}", f"B{b}")
    def mfmas(b):
        p.wlg(f"B{b}")
        for aa in range(8 - b):
            c = aa + b
            for r in range(8):
                n = 8 * aa + r
                cs = "0" if (b == 0 and r == 0) else vr(ACC+4*c, 4)
                p.i(f"v_mfma_f32_16x16x32_bf16 {vr(ACC+4*c,4)}, {ar(4*n,4)}, {vr(B[b&1]+4*r,4)}, {cs}")
    def uread(c):
        e = 246 + 4 * (c & 1)
        p.lg(f"ds_read_b64 {vr(e,2)}, v8 offset:{512*(7-c)}", f"U{c}")
    def epi(c):
        e = 246 + 4 * (c & 1)
        ac = ACC + 4 * c
        p.wlg(f"U{c}")
        p.i(f"""
        v_and_b32 v{T}, 0xffff0000, v{e+1}
        v_lshlrev_b32 v{T+1}, 16, v{e+1}
        v_and_b32 v{T+2}, 0xffff0000, v{e}
        v_lshlrev_b32 v{T+3}, 16, v{e}
        """)
        for i in range(4):
            p.i(f"v_fma_f32 v{T+i}, s86, v{T+i}, v{ac+i}")
        p.i(f"v_cvt_pk_bf16_f32 v{e+2}, v{T}, v{T+1}")
        p.i(f"v_cvt_pk_bf16_f32 v{e+3}, v{T+2}, v{T+3}")
        p.i(f"s_add_u32 s98, s99, {c*524288}")
        p.vm(f"buffer_store_dwordx2 {vr(e+2,2)}, v7, s[44:47], s98 offen {yflag}", "y")
    for rho in range(4):
        kv(rho)
        b0, b1 = 2 * rho, 2 * rho + 1
        breads(b0)
        if rho == 0:
            p.lg(f"ds_read_b128 {vr(L,4)}, v12 offset:{K1_GP}", "gpr")
        breads(b1)
        uread(b0); uread(b1)
        if rho == 0:
            p.wlg("gpr")
            p.vm(f"buffer_store_dwordx4 {vr(L,4)}, v13, s[48:51], s94 offen sc1", "S")
        if rho == 1:
            p.wvm("S")
            p.vm("buffer_atomic_add v244, v3, s[56:59], s95 offen sc0", "At")
        if rho == 2:
            p.wvm("At")
            p.i(f"""
            v_readfirstlane_b32 s95, v244
            s_cmp_eq_u32 s3, 3
            s_cselect_b32 s95, s95, 0
            s_cmp_eq_u32 s95, 7
            s_cselect_b32 s93, s93, {BIG}
            s_mov_b32 s94, s93
            """)
            for kk in range(8):
                p.vm(f"buffer_load_dwordx4 {vr(L+4*kk,4)}, v13, s[48:51], s94 offen sc1", "L")
                if kk < 7:
                    p.i("s_add_u32 s94, s94, 24576")
        if rho < 2:
            p.extend(gather(rho + 2))
        mfmas(b0)
        mfmas(b1)
        if rho == 3:
            p.i("s_nop 7")
        epi(b0)
        epi(b1)
    p.extend(st.item())
    p.wvm("L")
    for kk in range(1, 8):
        for e in range(4):
            p.i(f"v_add_f32 v{L+e}, v{L+e}, v{L+4*kk+e}")
    p.i(f"""
    v_cvt_pk_bf16_f32 v{T}, v{L}, v{L+1}
    v_cvt_pk_bf16_f32 v{T+1}, v{L+2}, v{L+3}
    v_lshlrev_b32 v{L}, 16, v{T}
    v_and_b32 v{L+1}, 0xffff0000, v{T}
    v_lshlrev_b32 v{L+2}, 16, v{T+1}
    v_and_b32 v{L+3}, 0xffff0000, v{T+1}
    """)
    p.vm(f"buffer_store_dwordx4 {vr(L,4)}, v13, s[52:55], s93 offen", "m")
    p.emit(a)
    st.flush(a, srd=24)
    a(f"{name}_end:")
    a("s_endpgm")
    return kernel_desc(name, 512, 102, 256)
```

```python
from asmlib import *
from k1 import WS_MOD, WS_Y, WS_X1, WS_H2, BIG

K2_LDS = 1024

def gen_k2(a, name="ln_kernel", qflag="nt", sflag="", diag=False):
    a(kernel_head(name))
    a("s_cmp_ge_u32 s2, 256")
    a(f"s_cbranch_scc1 {name}_end")
    st = Stamps(diag, 1, 70, 10)
    for it in st.item(): a(it[0])
    a("s_load_dwordx2 s[4:5], s[0:1], 0")
    a("s_load_dwordx2 s[6:7], s[0:1], 104")
    a("v_lshrrev_b32 v9, 6, v0")
    a("v_and_b32 v1, 63, v0")
    a("v_readfirstlane_b32 s3, v9")
    a("v_lshlrev_b32 v2, 3, v0")
    a("v_lshlrev_b32 v3, 6, v0")
    a("v_lshlrev_b32 v4, 4, v0")
    a("s_lshl_b32 s28, s2, 14")
    a("s_waitcnt lgkmcnt(0)")
    srd(a, 8, 4, 4 << 20)
    srd_off(a, 12, 6, WS_Y, 4 << 20)
    srd_off(a, 16, 6, WS_MOD, 24576)
    srd_off(a, 20, 6, WS_X1, 4 << 20)
    srd_off(a, 24, 6, WS_H2, 4 << 20)
    p = Prog()
    QR = 16
    YR = 32
    M = 48
    X = 72
    Y = 104
    V = 136
    T = 152
    NM = 168
    PK = 184
    for r in range(8):
        if r % 2 == 0:
            p.i(f"s_add_u32 s29, s28, {r*2048}")
        p.vm(f"buffer_load_dwordx2 {vr(QR+2*r,2)}, v2, s[8:11], s29 offen offset:{(r%2)*2048} {qflag}", "q")
    for c in range(4):
        p.vm(f"buffer_load_dwordx4 {vr(YR+4*c,4)}, v3, s[12:15], s28 offen offset:{16*c}", "y")
    for i in range(5):
        p.i(f"s_mov_b32 s29, {i*4096}")
        p.vm(f"buffer_load_dwordx4 {vr(M+4*i,4)}, v4, s[16:19], s29 offen", "m")
    p.i(f"""
    v_lshrrev_b32 v5, 4, v1
    v_lshlrev_b32 v5, 4, v5
    s_lshl_b32 s29, s3, 6
    v_add_u32 v5, s29, v5
    v_and_b32 v6, 15, v1
    v_lshlrev_b32 v6, 2, v6
    """)
    p.i(f"""
    v_lshrrev_b32 v7, 3, v0
    v_lshlrev_b32 v7, 10, v7
    v_and_b32 v8, 3, v0
    v_lshl_add_u32 v7, v8, 8, v7
    v_bfe_u32 v8, v0, 2, 1
    v_lshl_add_u32 v7, v8, 3, v7
    s_lshr_b32 s30, s2, 1
    s_lshl_b32 s30, s30, 15
    s_and_b32 s31, s2, 1
    s_lshl_b32 s31, s31, 7
    s_add_u32 s30, s30, s31
    """)
    def stats(lds_off, sbase):
        for r in range(8):
            x = X + 4 * r
            p.i(f"v_pk_add_f32 {vr(T+2*r,2)}, {vr(x,2)}, {vr(x+2,2)}")
        for r in range(8):
            p.i(f"v_add_f32 v{V+r}, v{T+2*r}, v{T+2*r+1}")
        for r in range(8):
            x = X + 4 * r
            p.i(f"v_pk_mul_f32 {vr(T+2*r,2)}, {vr(x,2)}, {vr(x,2)}")
        for r in range(8):
            x = X + 4 * r
            p.i(f"v_pk_fma_f32 {vr(T+2*r,2)}, {vr(x+2,2)}, {vr(x+2,2)}, {vr(T+2*r,2)}")
        for r in range(8):
            p.i(f"v_add_f32 v{V+8+r}, v{T+2*r}, v{T+2*r+1}")
        p.i("s_nop 1")
        for i in range(8):
            p.i(f"v_permlane32_swap_b32 v{V+i}, v{V+i+8}")
        for i in range(8):
            p.i(f"v_add_f32 v{V+i}, v{V+i}, v{V+i+8}")
        p.i("s_nop 1")
        for i in range(4):
            p.i(f"v_permlane16_swap_b32 v{V+i}, v{V+i+4}")
        for i in range(4):
            p.i(f"v_add_f32 v{V+i}, v{V+i}, v{V+i+4}")
        for sh in (8, 4, 2, 1):
            for i in range(4):
                p.i(f"v_add_f32_dpp v{V+i}, v{V+i}, v{V+i} row_ror:{sh} row_mask:0xf bank_mask:0xf")
        p.lg(f"ds_write_b128 v5, {vr(V,4)} offset:{lds_off}", "sw")
        p.wlg("ALL")
        p.i("s_barrier")
        p.lg(f"ds_read2_b32 {vr(T,2)}, v6 offset0:{lds_off//4} offset1:{lds_off//4+16}", "sr")
        p.lg(f"ds_read2_b32 {vr(T+2,2)}, v6 offset0:{lds_off//4+32} offset1:{lds_off//4+48}", "sr")
        p.wlg("ALL")
        p.i(f"""
        v_add_f32 v{T}, v{T}, v{T+1}
        v_add_f32 v{T+2}, v{T+2}, v{T+3}
        v_add_f32 v{T}, v{T}, v{T+2}
        v_mul_f32 v{T}, 0x3a800000, v{T}
        s_nop 1
        v_mov_b32_dpp v{T+1}, v{T} row_ror:8 row_mask:0xf bank_mask:0xf
        v_fma_f32 v{T+2}, -v{T}, v{T}, v{T+1}
        v_max_f32 v{T+2}, 0, v{T+2}
        v_add_f32 v{T+2}, 0x3727c5ac, v{T+2}
        v_rsq_f32 v{T+2}, v{T+2}
        s_nop 0
        v_mul_f32 v{T+3}, -v{T}, v{T+2}
        s_nop 0
        """)
        for r in range(8):
            p.i(f"v_readlane_b32 s{sbase+2*r}, v{T+2}, {r}")
        for r in range(8):
            p.i(f"v_readlane_b32 s{sbase+2*r+1}, v{T+3}, {r}")
        p.i("s_nop 1")
        for r in range(8):
            p.i(f"v_mov_b32 v{NM+2*r}, s{sbase+2*r+1}")
    def unpack_row(dst, src):
        p.i(f"v_lshlrev_b32 v{dst}, 16, v{src}")
        p.i(f"v_and_b32 v{dst+1}, 0xffff0000, v{src}")
        p.i(f"v_lshlrev_b32 v{dst+2}, 16, v{src+1}")
        p.i(f"v_and_b32 v{dst+3}, 0xffff0000, v{src+1}")
    p.wvm("q")
    p.extend(st.item())
    for r in range(8):
        unpack_row(X + 4 * r, QR + 2 * r)
    stats(0, 32)
    p.extend(st.item())
    p.wvm("m")
    p.extend(st.item())
    for c in range(4):
        for h in range(4):
            p.i(f"v_lshlrev_b32 v{Y+4*(2*h)+c}, 16, v{YR+4*c+h}")
            p.i(f"v_and_b32 v{Y+4*(2*h+1)+c}, 0xffff0000, v{YR+4*c+h}")
    for base in (M + 4, M + 16):
        for e in range(4):
            p.i(f"v_add_f32 v{base+e}, 1.0, v{base+e}")
        p.i(f"v_cvt_pk_bf16_f32 v{T}, v{base}, v{base+1}")
        p.i(f"v_cvt_pk_bf16_f32 v{T+1}, v{base+2}, v{base+3}")
        unpack_row(base, T)
    SA, CA, GA, SB, CB = M, M + 4, M + 8, M + 12, M + 16
    H = 200
    for r in range(8):
        for h in (0, 2):
            x = X + 4 * r + h
            p.i(f"v_pk_fma_f32 {vr(H+4*r+h,2)}, {vr(x,2)}, {sr(32+2*r,2)}, {vr(NM+2*r,2)} op_sel_hi:[1,0,0]")
    for r in range(8):
        for h in (0, 2):
            t = H + 4 * r + h
            p.i(f"v_pk_fma_f32 {vr(t,2)}, {vr(t,2)}, {vr(CA+h,2)}, {vr(SA+h,2)}")
    for r in range(8):
        for h in (0, 2):
            t = H + 4 * r + h
            p.i(f"v_pk_mul_f32 {vr(t,2)}, {vr(t,2)}, {vr(Y+4*r+h,2)}")
    for r in range(8):
        for h in (0, 2):
            t = H + 4 * r + h
            p.i(f"v_pk_fma_f32 {vr(t,2)}, {vr(t,2)}, {vr(GA+h,2)}, {vr(X+4*r+h,2)}")
    for r in range(8):
        p.i(f"v_cvt_pk_bf16_f32 v{PK+2*r}, v{H+4*r}, v{H+4*r+1}")
        p.i(f"v_cvt_pk_bf16_f32 v{PK+2*r+1}, v{H+4*r+2}, v{H+4*r+3}")
    for r in range(8):
        if r % 2 == 0:
            p.i(f"s_add_u32 s29, s28, {r*2048}")
        p.vm(f"buffer_store_dwordx2 {vr(PK+2*r,2)}, v2, s[20:23], s29 offen offset:{(r%2)*2048} {sflag}", "x1")
    for r in range(8):
        unpack_row(X + 4 * r, PK + 2 * r)
    p.extend(st.item())
    stats(256, 48)
    p.extend(st.item())
    for r in range(8):
        for h in (0, 2):
            x = X + 4 * r + h
            p.i(f"v_pk_fma_f32 {vr(H+4*r+h,2)}, {vr(x,2)}, {sr(48+2*r,2)}, {vr(NM+2*r,2)} op_sel_hi:[1,0,0]")
    for r in range(8):
        for h in (0, 2):
            t = H + 4 * r + h
            p.i(f"v_pk_fma_f32 {vr(t,2)}, {vr(t,2)}, {vr(CB+h,2)}, {vr(SB+h,2)}")
    for r in range(8):
        p.i(f"v_cvt_pk_bf16_f32 v{QR+2*r}, v{H+4*r}, v{H+4*r+1}")
        p.i(f"v_cvt_pk_bf16_f32 v{QR+2*r+1}, v{H+4*r+2}, v{H+4*r+3}")
    for r in range(8):
        p.vm(f"buffer_store_dwordx2 {vr(QR+2*r,2)}, v7, s[24:27], s30 offen offset:{16*r} {sflag}", "h2")
    p.extend(st.item())
    p.emit(a)
    st.flush(a, srd=8)
    a(f"{name}_end:")
    a("s_endpgm")
    return kernel_desc(name, 232, 96, 232)
```

```python
from asmlib import *
from k1 import WS_MOD, WS_X1, WS_H2, WS_H, BIG

class Weave:
    def __init__(self):
        self.mf = []
        self.pre = {}
        self.post = {}
        self.queue = []
    def add_pre(self, i, item): self.pre.setdefault(i, []).append(item)
    def add_post(self, i, item): self.post.setdefault(i, []).append(item)
    def emit(self, p, streams, cap=2):
        pos = [0] * len(streams)
        n = len(self.mf)
        for i in range(n):
            for it in self.pre.get(i, []):
                p.items.append(it)
            p.items.append(I(self.mf[i]))
            used = 0
            for it in self.post.get(i, []):
                p.items.append(it); used += 1
            for s, st in enumerate(streams):
                while pos[s] < len(st) and st[pos[s]][0] <= i and (used < cap or st[pos[s]][1] <= i):
                    p.items.append(st[pos[s]][2]); used += st[pos[s]][3]; pos[s] += 1
        for s, st in enumerate(streams):
            while pos[s] < len(st):
                p.items.append(st[pos[s]][2]); pos[s] += 1

def tr_addr_setup(a, base_regs, tmp):
    b0 = base_regs[0]
    a(f"""v_lshrrev_b32 v{tmp}, 2, v1
v_lshlrev_b32 v{b0}, 7, v{tmp}
v_lshrrev_b32 v{tmp}, 3, v1
v_and_b32 v{tmp}, 3, v{tmp}
v_lshl_add_u32 v{b0}, v{tmp}, 5, v{b0}
v_and_b32 v{tmp}, 3, v1
v_lshl_add_u32 v{b0}, v{tmp}, 3, v{b0}""")
    for t in range(1, 4):
        a(f"v_xor_b32 v{base_regs[t]}, {32*t}, v{b0}")

def dma_addr_setup(a, regs, tmp, tmp2, rowbytes, stmp):
    r0 = regs[0]
    a(f"""v_lshrrev_b32 v{tmp}, 3, v1
s_mov_b32 s{stmp}, {rowbytes}
v_mul_lo_u32 v{r0}, s{stmp}, v{tmp}
v_lshrrev_b32 v{tmp}, 4, v1
v_lshlrev_b32 v{tmp}, 1, v{tmp}
v_and_b32 v{tmp2}, 7, v1
v_xor_b32 v{tmp}, v{tmp}, v{tmp2}
v_lshl_add_u32 v{r0}, v{tmp}, 4, v{r0}""")
    for i in range(1, 4):
        a(f"v_add_u32 v{regs[i]}, {i*(8*rowbytes-1024)}, v{r0}")

def tile_map(a, xmap):
    if xmap == 0:
        a("s_and_b32 s22, s2, 1\ns_mov_b32 s23, 0\ns_lshr_b32 s21, s2, 3")
        return
    nr = xmap; nc = 32 // nr
    lr = nr.bit_length() - 1; lc = nc.bit_length() - 1
    gx = 16 // nc
    lg = gx.bit_length() - 1
    a(f"""s_and_b32 s20, s2, 7
s_lshr_b32 s21, s2, 3
s_lshr_b32 s22, s20, {lg}
s_lshl_b32 s22, s22, {lr}
s_lshr_b32 s23, s21, {lc}
s_add_u32 s22, s22, s23
s_and_b32 s23, s20, {gx-1}
s_lshl_b32 s23, s23, {lc}
s_and_b32 s24, s21, {nc-1}
s_add_u32 s23, s23, s24""")

K3_LDS = 163840

def gen_k3(a, name="gemm1_kernel", wflag="", hflag="", LOOK=2, diag=False, xmap=4, spread=1, cap=2, pro=4, dbg=''):
    R = 5
    a(kernel_head(name))
    a("s_cmp_ge_u32 s2, 256")
    a(f"s_cbranch_scc1 {name}_end")
    st = Stamps(diag, 2, 56, 22)
    for it in st.item(): a(it[0])
    for it in st.item(True): a(it[0])
    a("s_load_dwordx2 s[4:5], s[0:1], 56")
    a("s_load_dwordx2 s[6:7], s[0:1], 104")
    a("v_lshrrev_b32 v9, 6, v0")
    a("v_and_b32 v1, 63, v0")
    a("v_readfirstlane_b32 s3, v9")
    tile_map(a, xmap)
    a("""s_mul_i32 s24, s23, 448
s_and_b32 s25, s23, 1
s_lshl_b32 s25, s25, 6
s_add_u32 s26, s24, s25
s_add_u32 s27, s26, 256
s_sub_u32 s28, s24, 64
s_add_u32 s29, s24, 384
s_cmp_eq_u32 s25, 0
s_cselect_b32 s28, s29, s28""")
    TRB = [2, 3, 4, 5]
    TRH = [10, 11, 12, 13]
    TRX = [14, 15, 16, 17]
    DM = [6, 7, 8, 18]
    tr_addr_setup(a, TRB, 9)
    for t in range(4):
        a(f"v_add_u32 v{TRH[t]}, 0x10000, v{TRB[t]}")
        a(f"v_add_u32 v{TRX[t]}, 0x20000, v{TRB[t]}")
    dma_addr_setup(a, DM, 9, 19, 7168, 30)
    a("v_lshlrev_b32 v20, 4, v1")
    a("v_add_u32 v21, 0x8000, v20")
    a(f"v_add_u32 v22, {112*1024}, v20")
    a("s_waitcnt lgkmcnt(0)")
    srd(a, 8, 4, 1024 * 3584 * 2)
    srd_off(a, 12, 6, WS_H2, 4 << 20)
    srd_off(a, 16, 6, WS_H, 2048 * 3584 * 2)
    a("""s_lshl_b32 s30, s22, 3
s_lshl_b32 s31, s3, 1
s_add_u32 s30, s30, s31
s_mul_i32 s33, s30, 114688
s_lshl_b32 s30, s30, 15
s_lshl_b32 s32, s3, 12""")
    a(f"""s_lshr_b32 s34, s3, 1
s_mul_i32 s34, s34, {32*7168}
s_and_b32 s35, s3, 1
s_lshl_b32 s35, s35, 7
s_add_u32 s34, s34, s35
s_add_u32 s34, s34, s26
s_mul_i32 s35, s3, {32*7168}
s_add_u32 s36, s35, s28
s_add_u32 s35, s35, s27""")
    a("""s_lshl_b32 s37, s26, 4
s_add_u32 s37, s37, s33
s_lshl_b32 s38, s27, 4
s_add_u32 s38, s38, s33
s_add_u32 s39, s28, s25
s_lshl_b32 s39, s39, 4
s_add_u32 s39, s39, s33""")
    G3B = {0: [24, 25], 1: [26, 27], 2: [28, 29]}
    for k, src in enumerate((TRB, TRH, TRX)):
        a(f"v_xor_b32 v{G3B[k][0]}, s25, v{src[0]}")
        a(f"v_xor_b32 v{G3B[k][1]}, s25, v{src[1]}")

    ACC = {1: 32, 2: 96, 3: 128}
    BF = [144, 160, 176]
    T = 192
    PKR = 208

    stages = []
    for s in range(8): stages.append((1, s))
    for s in range(4): stages.append((2, s))
    for s in range(4): stages.append((3, s))
    NS = len(stages)

    def loads(si):
        G, s = stages[si]
        slot = si % R
        out = []
        tag = f"S{si}"
        if G == 1:
            for mt in range(2):
                for kk in range(4):
                    ks = 4 * s + kk
                    out.append(VM(f"buffer_load_dwordx4 {ar(128*mt+4*ks,4)}, v{20+mt}, s[12:15], s30 offen offset:{1024*kk}", tag))
            out.append(I("s_add_u32 s30, s30, 4096"))
        sreg = {1: 34, 2: 35, 3: 36}[G]
        step = {1: 64 * 7168, 2: 128 * 7168, 3: 128 * 7168}[G]
        for j in range(2):
            out.append(I(f"s_add_u32 m0, s32, {slot*32768 + j*16384}"))
            out.append(I("s_nop 0") if False else None)
            for i in range(4):
                out.append(VM(f"buffer_load_dwordx4 v{DM[i]}, s[8:11], s{sreg} offen offset:{1024*i} {wflag} lds", tag))
            out.append(I(f"s_add_u32 s{sreg}, s{sreg}, {step}"))
        return [x for x in out if x is not None]

    groups = []
    for si, (G, s) in enumerate(stages):
        if G == 1:
            for line in range(2):
                for t in range(4):
                    groups.append((si, [(2 * kk + line, 4 * s + kk) for kk in range(4)], t, G, 4 * line + t, s == 0))
        else:
            nt = 4 if G == 2 else 2
            for hq in range(2):
                for t in range(nt):
                    groups.append((si, [(4 * hq + kk, 8 * s + 4 * hq + kk) for kk in range(4)], t, G, t, s == 0 and hq == 0))
    NG = len(groups)

    def reads(gi):
        si, lk, t, G, ai, first = groups[gi]
        slot = si % R
        out = []
        for f, (ls, ks) in enumerate(lk):
            off = slot * 32768 + ls * 4096
            hi = off >> 16
            off &= 0xffff
            base = (G3B[hi][t] if G == 3 else (TRB, TRH, TRX)[hi][t])
            d = BF[gi % 3] + 4 * f
            out.append(LG(f"ds_read_b64_tr_b16 {vr(d,2)}, v{base} offset:{off}", f"G{gi}"))
            out.append(LG(f"ds_read_b64_tr_b16 {vr(d+2,2)}, v{base} offset:{off+2048}", f"G{gi}"))
        return out

    w = Weave()
    for gi, (si, lk, t, G, ai, first) in enumerate(groups):
        nacc = {1: 8, 2: 4, 3: 2}[G]
        for mt in range(2):
            ac = ACC[G] + 4 * (mt * nacc + ai)
            for f, (ls, ks) in enumerate(lk):
                cs = "0" if (first and f == 0) else vr(ac, 4)
                w.mf.append(f"v_mfma_f32_16x16x32_bf16 {vr(ac,4)}, {vr(BF[gi%3]+4*f,4)}, {ar(128*mt+4*ks,4)}, {cs}")
        w.add_pre(8 * gi, WLG(f"G{gi}"))
        if gi + LOOK < NG:
            for j, it in enumerate(reads(gi + LOOK)):
                w.add_post(8 * gi + j, it)
    first_group = {}
    for gi, g in enumerate(groups):
        first_group.setdefault(g[0], gi)
    ldstream = []
    STK3 = []
    for si in range(1, NS):
        gi = first_group[si] - LOOK
        w.add_pre(8 * gi, WVM(f"S{si}"))
        w.add_pre(8 * gi, I("s_barrier"))
        STK3.append(8 * gi)
        nxt = si + R - 2
        if nxt < NS:
            its = loads(nxt)
            span = 8 * ((first_group[si + 1] if si + 1 < NS else NG) - first_group[si])
            nvm = sum(1 for it in its if it[1] == 'vm')
            k = 0
            for it in its:
                ldstream.append((8 * gi + (k * span // nvm if spread else 0), 10**9, it, 1))
                if it[1] == 'vm': k += 1
    def epi(G, mt, pr, bank):
        nacc = {1: 8, 2: 4, 3: 2}[G]
        a0 = ACC[G] + 4 * (mt * nacc + 2 * pr)
        t = T + 8 * bank
        pk = PKR + 4 * bank
        out = []
        for e in range(8): out.append((I(f"v_mul_f32 v{t+e}, 0xbfb8aa3b, v{a0+e}"), 1))
        for e in range(8): out.append((I(f"v_exp_f32 v{t+e}, v{t+e}"), 2))
        for e in range(8): out.append((I(f"v_add_f32 v{t+e}, 1.0, v{t+e}"), 1))
        for e in range(8): out.append((I(f"v_rcp_f32 v{t+e}, v{t+e}"), 2))
        for e in range(8): out.append((I(f"v_mul_f32 v{t+e}, v{a0+e}, v{t+e}"), 1))
        for e in range(4): out.append((I(f"v_cvt_pk_bf16_f32 v{pk+e}, v{t+2*e}, v{t+2*e+1}"), 1))
        sreg = {1: 37, 2: 38, 3: 39}[G]
        vo = 20 if mt == 0 else 22
        out.append((VM(f"buffer_store_dwordx4 {vr(pk,4)}, v{vo}, s[16:19], s{sreg} offen offset:{1024*pr} {hflag}", "st"), 1))
        return out
    estream = []
    g2start = 8 * first_group[8] + 2
    g3start = 8 * first_group[12] + 2
    bank = 0
    for mt in range(2):
        for pr in range(4):
            for it, cost in epi(1, mt, pr, bank):
                estream.append((g2start, 10**9, it, cost))
            bank ^= 1
    for mt in range(2):
        for pr in range(2):
            for it, cost in epi(2, mt, pr, bank):
                estream.append((g3start, 10**9, it, cost))
            bank ^= 1

    p = Prog()
    for si in range(R - 2 + 1):
        for it in loads(si):
            p.items.append(it)
            if it[0].startswith("s_add_u32 m0"):
                p.i("s_nop 0")
    p.wvm("S0")
    p.i("s_barrier")
    p.extend(st.item())
    for x in STK3:
        for it in st.item(): w.add_pre(x, it)
    for gi in range(LOOK):
        p.extend(reads(gi))
    if 'noepi' in dbg: estream = []
    if 'nold' in dbg:
        ldstream = []
        for k in list(w.pre): w.pre[k] = [it for it in w.pre[k] if it[1] != 'wvm']
    if 'nobar' in dbg:
        for k in list(w.pre): w.pre[k] = [it for it in w.pre[k] if it[0] != 's_barrier']
    if 'nost' in dbg:
        for k in list(w.pre): w.pre[k] = [it for it in w.pre[k] if not (it[0] or '').startswith('s_mem')]
    w.emit(p, [ldstream, estream], cap=cap)
    p.extend(st.item())
    p.i("s_nop 7")
    for mt in range(2):
        for it, cost in epi(3, mt, 0, bank):
            p.items.append(it)
        bank ^= 1
    p.extend(st.item(True))
    fix_m0(p)
    p.emit(a)
    st.flush(a, srd=8)
    a(f"{name}_end:")
    a("s_endpgm")
    return kernel_desc(name, 512, 102, 256)

def fix_m0(p):
    out = []
    for k, it in enumerate(p.items):
        out.append(it)
        if it[0] and it[0].startswith("s_add_u32 m0"):
            nx = p.items[k + 1]
            if nx[0] is None or " lds" in nx[0]:
                out.append(I("s_nop 0"))
    p.items = out

K4_SLOT = 16384
def gen_k4(a, name="gemm2_kernel", wflag="", aflag="", oflag="", R=8, AB=6, LOOK=2, diag=False, xmap=4, spread=1):
    NS = 28
    a(kernel_head(name))
    a("s_cmp_ge_u32 s2, 256")
    a(f"s_cbranch_scc1 {name}_end")
    st = Stamps(diag, 3, 56, 22)
    for it in st.item(): a(it[0])
    for it in st.item(True): a(it[0])
    a("s_load_dwordx2 s[4:5], s[0:1], 64")
    a("s_load_dwordx2 s[6:7], s[0:1], 104")
    a("s_load_dwordx2 s[40:41], s[0:1], 88")
    a("v_lshrrev_b32 v9, 6, v0")
    a("v_and_b32 v1, 63, v0")
    a("v_readfirstlane_b32 s3, v9")
    tile_map(a, xmap)
    TRB = [2, 3, 4, 5]; TRH = [10, 11, 12, 13]
    DM = [6, 7, 8, 18]
    tr_addr_setup(a, TRB, 9)
    for t in range(4):
        a(f"v_add_u32 v{TRH[t]}, 0x10000, v{TRB[t]}")
    dma_addr_setup(a, DM, 9, 19, 2048, 30)
    a("v_lshlrev_b32 v20, 4, v1")
    a(f"v_add_u32 v21, {112*1024}, v20")
    a("""v_and_b32 v9, 15, v1
v_lshlrev_b32 v22, 11, v9
v_lshrrev_b32 v9, 4, v1
v_lshl_add_u32 v22, v9, 3, v22
v_add_u32 v23, 0x8000, v22
v_lshlrev_b32 v24, 4, v9""")
    a("s_waitcnt lgkmcnt(0)")
    srd(a, 8, 4, 3584 * 1024 * 2)
    srd_off(a, 12, 6, WS_H, 2048 * 3584 * 2)
    srd_off(a, 16, 6, WS_X1, 4 << 20)
    srd_off(a, 44, 6, WS_MOD, 24576)
    srd(a, 48, 40, 4 << 20)
    a(f"""s_lshl_b32 s30, s22, 3
s_lshl_b32 s31, s3, 1
s_add_u32 s30, s30, s31
s_lshl_b32 s33, s30, 15
s_mul_i32 s30, s30, 114688
s_lshl_b32 s32, s3, 12
s_lshl_b32 s34, s3, 16
s_lshl_b32 s35, s23, 7
s_add_u32 s34, s34, s35
s_add_u32 s33, s33, s35
s_lshl_b32 s36, s23, 8
s_add_u32 s36, s36, 20480""")
    ACC = 32
    BF = [64, 80, 96]
    XR = 112
    GB = 128
    T = 144
    def loads(si):
        slot = si % R
        ab = si % AB
        tag = f"S{si}"
        out = []
        out.append(I(f"s_add_u32 m0, s32, {slot*K4_SLOT}"))
        for mt in range(2):
            for kk in range(4):
                out.append(VM(f"buffer_load_dwordx4 {ar(32*ab+16*mt+4*kk,4)}, v{20+mt}, s[12:15], s30 offen offset:{1024*kk} {aflag}", tag))
        out.append(I("s_add_u32 s30, s30, 4096"))
        for i in range(4):
            out.append(VM(f"buffer_load_dwordx4 v{DM[i]}, s[8:11], s34 offen offset:{1024*i} {wflag} lds", tag))
        out.append(I(f"s_add_u32 s34, s34, {128*2048}"))
        return out
    NG = NS * 4
    def reads(gi):
        si, t = divmod(gi, 4)
        out = []
        for f in range(4):
            off = (si % R) * K4_SLOT + f * 4096
            base = (TRB, TRH)[off >> 16][t]
            off &= 0xffff
            d = BF[gi % 3] + 4 * f
            out.append(LG(f"ds_read_b64_tr_b16 {vr(d,2)}, v{base} offset:{off}", f"G{gi}"))
            out.append(LG(f"ds_read_b64_tr_b16 {vr(d+2,2)}, v{base} offset:{off+2048}", f"G{gi}"))
        return out
    w = Weave()
    for gi in range(NG):
        si, t = divmod(gi, 4)
        for mt in range(2):
            ac = ACC + 4 * (4 * mt + t)
            for f in range(4):
                cs = "0" if (si == 0 and f == 0) else vr(ac, 4)
                w.mf.append(f"v_mfma_f32_16x16x32_bf16 {vr(ac,4)}, {vr(BF[gi%3]+4*f,4)}, {ar(32*(si%AB)+16*mt+4*f,4)}, {cs}")
        w.add_pre(8 * gi, WLG(f"G{gi}"))
        if gi + LOOK < NG:
            for j, it in enumerate(reads(gi + LOOK)):
                w.add_post(8 * gi + j, it)
    D = min(R - 2, AB - 2)
    ldstream = []
    xl = []
    for mt in range(2):
        for t in range(4):
            xl.append(VM(f"buffer_load_dwordx2 {vr(XR+2*(4*mt+t),2)}, v{22+mt}, s[16:19], s33 offen offset:{32*t}", "x"))
    for t in range(4):
        xl.append(VM(f"buffer_load_dwordx4 {vr(GB+4*t,4)}, v24, s[44:47], s36 offen offset:{64*t}", "x"))
    for si in range(1, NS):
        gi = 4 * si - LOOK
        w.add_pre(8 * gi, WVM(f"S{si}"))
        w.add_pre(8 * gi, I("s_barrier"))
        nxt = si + D
        if nxt < NS:
            k = 0
            for it in loads(nxt):
                ldstream.append((8 * gi + (k * 32 // 12 if spread else 0), 10**9, it, 1))
                if it[1] == 'vm': k += 1
        if si == NS - D:
            for it in xl:
                ldstream.append((8 * gi, 10**9, it, 1))
    p = Prog()
    for si in range(D + 1):
        p.extend(loads(si))
    p.wvm("S0")
    p.i("s_barrier")
    p.extend(st.item())
    for si in range(2, NS, 2):
        for it in st.item(): w.add_pre(8 * (4 * si - LOOK), it)
    for gi in range(LOOK):
        p.extend(reads(gi))
    w.emit(p, [ldstream], cap=2)
    p.extend(st.item())
    p.wvm("x")
    p.i("s_nop 7")
    for mt in range(2):
        for t in range(4):
            i = 4 * mt + t
            ac = ACC + 4 * i
            x = XR + 2 * i
            tt = T + 4 * (i % 2)
            p.i(f"""
            v_lshlrev_b32 v{tt}, 16, v{x}
            v_and_b32 v{tt+1}, 0xffff0000, v{x}
            v_lshlrev_b32 v{tt+2}, 16, v{x+1}
            v_and_b32 v{tt+3}, 0xffff0000, v{x+1}
            """)
            for e in range(4):
                p.i(f"v_fmac_f32 v{tt+e}, v{GB+4*t+e}, v{ac+e}")
            p.i(f"v_cvt_pk_bf16_f32 v{x}, v{tt}, v{tt+1}")
            p.i(f"v_cvt_pk_bf16_f32 v{x+1}, v{tt+2}, v{tt+3}")
            p.vm(f"buffer_store_dwordx2 {vr(x,2)}, v{22+mt}, s[48:51], s33 offen offset:{32*t} {oflag}", "o")
    p.extend(st.item(True))
    fix_m0(p)
    p.emit(a)
    st.flush(a, srd=8)
    a(f"{name}_end:")
    a("s_endpgm")
    return kernel_desc(name, 256 + 32 * AB, 102, 256), R * K4_SLOT
```
